```python
import torch

def _softmax(x, axis=-1):
    return torch.softmax(x, dim=axis)
def _gelu(x):
    return torch.nn.functional.gelu(x, approximate="tanh")
def _silu(x):
    return torch.nn.functional.silu(x)
def _sigmoid(x):
    return torch.sigmoid(x)
def _layernorm(x, axis=-1, eps=1e-5):
    m = x.mean(dim=axis, keepdim=True)
    v = x.var(dim=axis, keepdim=True, unbiased=False)
    return (x - m) / torch.sqrt(v + eps)
def _scatter_add(tgt, idx, src, axis=0):
    return tgt.clone().index_add_(axis, idx, src)
def _segment_sum(src, seg, n):
    out = torch.zeros((n,) + src.shape[1:], dtype=src.dtype)
    return out.index_add_(0, seg, src)
def _pad(x, pw):
    flat = tuple(v for pair in reversed(pw) for v in pair)
    return torch.nn.functional.pad(x, flat)

kernel_name = 'concat_heads__mha_block_cached__mha_block_cached__near_ridge'

def setup_inputs():

    _w = (lambda a: (lambda t: t.to(torch.bfloat16) if t.is_floating_point() else t)(torch.as_tensor(a)))
    def _A_setup():
        B, Sq, D = 8, 192, 512
        H, Sk, Dh = 32, 1024, 128
        return {
            "x": _w((lambda *s: torch.randn(*s, dtype=torch.bfloat16) * 0.8)(B, Sq, D)),
            "k_cache": _w((lambda *s: torch.randn(*s, dtype=torch.bfloat16) * 0.8)(B, H, Sk, Dh)),
            "v_cache": _w((lambda *s: torch.randn(*s, dtype=torch.bfloat16) * 0.05)(B, H, Sk, Dh)),
            "wq": _w((lambda *s: torch.randn(*s, dtype=torch.bfloat16) * 0.8)(D, H * Dh) * (D ** -0.5)),
            "wo": _w((lambda *s: torch.randn(*s, dtype=torch.bfloat16) * 0.05)(H * Dh, D) * ((H * Dh) ** -0.5)),
        }
    _A_in = _A_setup()

    def _B_setup():
        B, Sq, D = 8, 192, 512
        H, Sk, Dh = 32, 1024, 128
        return {
            "x": _w((lambda *s: torch.randn(*s, dtype=torch.bfloat16) * 0.8)(B, Sq, D)),
            "k_cache": _w((lambda *s: torch.randn(*s, dtype=torch.bfloat16) * 0.8)(B, H, Sk, Dh)),
            "v_cache": _w((lambda *s: torch.randn(*s, dtype=torch.bfloat16) * 0.05)(B, H, Sk, Dh)),
            "wq": _w((lambda *s: torch.randn(*s, dtype=torch.bfloat16) * 0.8)(D, H * Dh) * (D ** -0.5)),
            "wo": _w((lambda *s: torch.randn(*s, dtype=torch.bfloat16) * 0.05)(H * Dh, D) * ((H * Dh) ** -0.5)),
        }
    _B_in = _B_setup()

    return {
        "A_x": _A_in["x"],
        "A_k_cache": _A_in["k_cache"],
        "A_v_cache": _A_in["v_cache"],
        "A_wq": _A_in["wq"],
        "A_wo": _A_in["wo"],
        "B_x": _B_in["x"],
        "B_k_cache": _B_in["k_cache"],
        "B_v_cache": _B_in["v_cache"],
        "B_wq": _B_in["wq"],
        "B_wo": _B_in["wo"],
    }

def reference(A_x, A_k_cache, A_v_cache, A_wq, A_wo, B_x, B_k_cache, B_v_cache, B_wq, B_wo):
    def _A_ref(x, k_cache, v_cache, wq, wo):
        B, Sq, D = x.shape
        H, Dh = 32, 128
        q = (lambda x, *d: x.permute(*d))((x @ wq).reshape(B, Sq, H, Dh), 0, 2, 1, 3)
        scores = torch.einsum("bhqd,bhkd->bhqk", q, k_cache) * (Dh ** -0.5)
        p = _softmax(scores, axis=-1)
        o = torch.einsum("bhqk,bhkd->bhqd", p, v_cache)
        return (lambda x, *d: x.permute(*d))(o, 0, 2, 1, 3).reshape(B, Sq, H * Dh) @ wo

    def _B_ref(x, k_cache, v_cache, wq, wo):
        B, Sq, D = x.shape
        H, Dh = 32, 128
        q = (lambda x, *d: x.permute(*d))((x @ wq).reshape(B, Sq, H, Dh), 0, 2, 1, 3)
        scores = torch.einsum("bhqd,bhkd->bhqk", q, k_cache) * (Dh ** -0.5)
        p = _softmax(scores, axis=-1)
        o = torch.einsum("bhqk,bhkd->bhqd", p, v_cache)
        return (lambda x, *d: x.permute(*d))(o, 0, 2, 1, 3).reshape(B, Sq, H * Dh) @ wo

    a = _A_ref(A_x, A_k_cache, A_v_cache, A_wq, A_wo)
    b = _B_ref(B_x, B_k_cache, B_v_cache, B_wq, B_wo)
    return torch.concatenate([a, b], axis=-1)
```

```python
import re

class Asm:
    def __init__(self):
        self.lines = []
        self.idx = 0
        self.reset_haz()
        self.nnop = 0

    def reset_haz(self):
        self.valu_w = {}
        self.trans_w = {}
        self.mfma_w = {}
        self.mfma_c = {}
        self.store_r = {}
        self.sgpr_valu_w = {}
        self.m0_w = -100

    def raw(self, text):
        self.lines.append(text)

    def comment(self, text):
        self.lines.append('    ; ' + text)

    def label(self, name, pad=True):
        if pad:
            self.nop_all()
        self.lines.append(name + ':')

    def nop_all(self):
        need = 0
        for r, (i, p, _, _) in self.mfma_w.items():
            need = max(need, self._mf(p) - (self.idx - i - 1))
        for r, i in self.valu_w.items():
            need = max(need, 2 - (self.idx - i - 1))
        for r, i in self.sgpr_valu_w.items():
            need = max(need, 5 - (self.idx - i - 1))
        need = max(need, 1 - (self.idx - self.m0_w - 1))
        self._nop(need)
        self.reset_haz()

    @staticmethod
    def _mf(p):
        return {2: 5, 4: 8, 8: 12, 16: 20}[p]
    @staticmethod
    def _mc(p):
        return {2: 4, 4: 6, 8: 10, 16: 18}[p]
    @staticmethod
    def _war(p):
        return {2: 1, 4: 3, 8: 7, 16: 15}[p]

    def _nop(self, n):
        while n > 0:
            k = min(n, 16)
            self.lines.append('    s_nop %d' % (k - 1))
            self.idx += k
            self.nnop += k
            n -= k

    def _need(self, last, ws):
        return ws - (self.idx - last - 1)

    def ins(self, text, kind, vdef=(), vuse=(), sdef=(), suse=(), mf=None):
        need = 0
        vdef = list(vdef); vuse = list(vuse)
        if kind in ('valu', 'trans', 'perm', 'rfl'):
            for r in vdef + vuse:
                if r in self.mfma_w:
                    i, p, _, _ = self.mfma_w[r]
                    need = max(need, self._need(i, self._mf(p)))
            for r in vdef:
                if r in self.mfma_c:
                    i, p = self.mfma_c[r]
                    need = max(need, self._need(i, self._war(p)))
                if r in self.store_r:
                    need = max(need, self._need(self.store_r[r], 2))
            for r in vuse:
                if r in self.trans_w:
                    need = max(need, self._need(self.trans_w[r], 1))
            for s in suse:
                if s in self.sgpr_valu_w:
                    need = max(need, self._need(self.sgpr_valu_w[s], 2))
            if kind == 'perm':
                for r in vdef + vuse:
                    if r in self.valu_w:
                        need = max(need, self._need(self.valu_w[r], 2))
            if kind == 'rfl':
                for r in vuse:
                    if r in self.valu_w:
                        need = max(need, self._need(self.valu_w[r], 1))
        elif kind == 'mfma':
            p, A, B, C, D = mf
            for r in list(A) + list(B) + list(C or []):
                if r in self.valu_w:
                    need = max(need, self._need(self.valu_w[r], 2))
            for r in list(A) + list(B):
                if r in self.mfma_w:
                    i, pp, _, _ = self.mfma_w[r]
                    need = max(need, self._need(i, self._mf(pp)))
            if C:
                for r in C:
                    if r in self.mfma_w:
                        i, pp, ds, dl = self.mfma_w[r]
                        if not (ds == C[0] and dl == len(C) and pp == p):
                            need = max(need, self._need(i, self._mc(pp)))
            for r in D:
                if r in self.mfma_w and not (C and r in C):
                    i, pp, ds, dl = self.mfma_w[r]
                    need = max(need, self._need(i, self._mc(pp)))
        elif kind in ('vmem', 'store', 'ds', 'dma'):
            for r in vdef + vuse:
                if r in self.mfma_w:
                    i, p, _, _ = self.mfma_w[r]
                    need = max(need, self._need(i, self._mf(p)))
            for r in vuse:
                if r in self.trans_w:
                    need = max(need, self._need(self.trans_w[r], 1))
            for s in suse:
                if s in self.sgpr_valu_w:
                    need = max(need, self._need(self.sgpr_valu_w[s], 5))
            if kind == 'dma':
                need = max(need, self._need(self.m0_w, 1))
        elif kind == 'salu':
            for s in suse:
                if s in self.sgpr_valu_w:
                    need = max(need, self._need(self.sgpr_valu_w[s], 2))
        self._nop(need)
        self.lines.append('    ' + text)
        me = self.idx
        self.idx += 1
        if kind in ('valu', 'trans', 'perm', 'rfl'):
            for r in vdef:
                self.valu_w[r] = me
                self.mfma_w.pop(r, None)
                if kind == 'trans':
                    self.trans_w[r] = me
                else:
                    self.trans_w.pop(r, None)
            for s in sdef:
                self.sgpr_valu_w[s] = me
        elif kind == 'mfma':
            p, A, B, C, D = mf
            for r in D:
                self.mfma_w[r] = (me, p, D[0], len(D))
                self.valu_w.pop(r, None)
            for r in (C or []):
                self.mfma_c[r] = (me, p)
        elif kind == 'store':
            for r in vuse:
                self.store_r[r] = me
        elif kind in ('vmem', 'ds'):
            for r in vdef:
                self.valu_w.pop(r, None); self.trans_w.pop(r, None)
        elif kind == 'salu':
            for s in sdef:
                self.sgpr_valu_w.pop(s, None)
                if s == 'm0':
                    self.m0_w = me

    @staticmethod
    def vr(a, n=1):
        return 'v%d' % a if n == 1 else 'v[%d:%d]' % (a, a + n - 1)
    @staticmethod
    def sr(a, n=1):
        return 's%d' % a if n == 1 else 's[%d:%d]' % (a, a + n - 1)

    def _ops(self, ops):
        v = []; s = []
        for o in ops:
            o = str(o).strip().lstrip('-')
            m = re.fullmatch(r'v(\d+)', o)
            if m: v.append(int(m.group(1))); continue
            m = re.fullmatch(r'v\[(\d+):(\d+)\]', o)
            if m: v += list(range(int(m.group(1)), int(m.group(2)) + 1)); continue
            m = re.fullmatch(r's(\d+)', o)
            if m: s.append(int(m.group(1))); continue
            m = re.fullmatch(r's\[(\d+):(\d+)\]', o)
            if m: s += list(range(int(m.group(1)), int(m.group(2)) + 1)); continue
            if o in ('vcc', 'm0'):
                s.append(o)
        return v, s

    def valu(self, op, dst, *src, trans=False, rmw=False):
        dv, ds_ = self._ops([dst]); uv, us = self._ops(src)
        if rmw: uv = uv + dv
        self.ins('%s %s, %s' % (op, dst, ', '.join(str(x) for x in src)), 'trans' if trans else 'valu', dv, uv, ds_, us)

    def salu(self, op, dst, *src):
        _, ds_ = self._ops([dst]); _, us = self._ops(src)
        self.ins('%s %s, %s' % (op, dst, ', '.join(str(x) for x in src)) if src else '%s %s' % (op, dst), 'salu', (), (), ds_, us)

    def scmp(self, op, a, b):
        _, us = self._ops([a, b])
        self.ins('%s %s, %s' % (op, a, b), 'salu', (), (), (), us)

    def other(self, text):
        self.ins(text, 'other')

    def rfl(self, sdst, vsrc):
        self.ins('v_readfirstlane_b32 s%d, v%d' % (sdst, vsrc), 'rfl', (), [vsrc], [sdst], ())

    def mfma32(self, D, A, B, C='same'):
        Dr = list(range(D, D + 16)); Ar = list(range(A, A + 4)); Br = list(range(B, B + 4))
        if C == 'same':
            Cr = Dr; ct = 'v[%d:%d]' % (D, D + 15)
        else:
            Cr = None; ct = '0'
        self.ins('v_mfma_f32_32x32x16_bf16 v[%d:%d], v[%d:%d], v[%d:%d], %s' % (D, D + 15, A, A + 3, B, B + 3, ct), 'mfma', mf=(8, Ar, Br, Cr, Dr))

    def ds_read128(self, dst, addr, off=0):
        self.ins('ds_read_b128 v[%d:%d], v%d offset:%d' % (dst, dst + 3, addr, off), 'ds', range(dst, dst + 4), [addr])
    def ds_read_tr(self, dst, addr, off=0):
        self.ins('ds_read_b64_tr_b16 v[%d:%d], v%d offset:%d' % (dst, dst + 1, addr, off), 'ds', range(dst, dst + 2), [addr])
    def ds_write128(self, addr, src, off=0):
        self.ins('ds_write_b128 v%d, v[%d:%d] offset:%d' % (addr, src, src + 3, off), 'store', (), [addr] + list(range(src, src + 4)))
    def ds_read32(self, dst, addr, off=0):
        self.ins('ds_read_b32 v%d, v%d offset:%d' % (dst, addr, off), 'ds', [dst], [addr])
    def ds_write32(self, addr, src, off=0):
        self.ins('ds_write_b32 v%d, v%d offset:%d' % (addr, src, off), 'store', (), [addr, src])

    def dma(self, voff, srd, soff, nt=False):
        self.ins('buffer_load_dwordx4 v%d, s[%d:%d], %s offen%s lds' % (voff, srd, srd + 3, soff, ' nt' if nt else ''), 'dma', (), [voff], (), list(range(srd, srd + 4)) + self._ops([soff])[1])
    def bload128(self, dst, voff, srd, soff='0', off=0, extra=''):
        self.ins('buffer_load_dwordx4 v[%d:%d], v%d, s[%d:%d], %s offen offset:%d%s' % (dst, dst + 3, voff, srd, srd + 3, soff, off, extra), 'vmem', range(dst, dst + 4), [voff], (), list(range(srd, srd + 4)) + self._ops([soff])[1])
    def bstore128(self, src, voff, srd, soff='0', off=0, extra=''):
        self.ins('buffer_store_dwordx4 v[%d:%d], v%d, s[%d:%d], %s offen offset:%d%s' % (src, src + 3, voff, srd, srd + 3, soff, off, extra), 'store', (), [voff] + list(range(src, src + 4)), (), list(range(srd, srd + 4)) + self._ops([soff])[1])
    def bstore64(self, src, voff, srd, soff='0', off=0, extra=''):
        self.ins('buffer_store_dwordx2 v[%d:%d], v%d, s[%d:%d], %s offen offset:%d%s' % (src, src + 1, voff, srd, srd + 3, soff, off, extra), 'store', (), [voff] + list(range(src, src + 2)), (), list(range(srd, srd + 4)) + self._ops([soff])[1])
    def bstore32(self, src, voff, srd, soff='0', off=0, extra=''):
        self.ins('buffer_store_dword v%d, v%d, s[%d:%d], %s offen offset:%d%s' % (src, voff, srd, srd + 3, soff, off, extra), 'store', (), [voff, src], (), list(range(srd, srd + 4)) + self._ops([soff])[1])

    def wait(self, vm=None, lgkm=None):
        t = 's_waitcnt'
        if vm is not None: t += ' vmcnt(%d)' % vm
        if lgkm is not None: t += ' lgkmcnt(%d)' % lgkm
        self.other(t)
    def barrier(self):
        self.other('s_barrier')
    def branch(self, op, lab):
        self.other('%s %s' % (op, lab))
    def cond_begin(self):
        self._cond_idx = self.idx
    def cond_end(self):
        inside = self.idx - self._cond_idx
        self.idx = self._cond_idx
        self.m0_w = min(self.m0_w, self.idx - 1)
    def text(self):
        return '\n'.join(self.lines) + '\n'
```

```python
from asmlib import Asm
import struct

def f2u(x): return struct.unpack('<I', struct.pack('<f', x))[0]

O = 0
Q = 64
S = 96
POOL = 112
KA = 144
VA = 152
MRUN = 156; THR = 157; NEGMC = 158; L0 = 159; L1 = 160; T0 = 161; T1 = 162
DK = 163; DV = 164; DQ = 165; LANE = 166; TMP = 167
NV = 168

SRD_X = 8; SRD_WQ = 12; SRD_K = 16; SRD_V = 20; SRD_O = 24
sW = 28; sHS = 29; sQG = 30; sC = 31
sQB = 32
sSO = 36
SRD_Q = 40
sQC = 44; sKVS = 45; sKVM = 46; sKSO = 47; sVSO = 48; sT = 49; sIT = 50; sT2 = 51; sT3 = 52
sPTR = 56
sBLK = 64; sB = 65; sHP = 66; sTC = 67

SCALE = 1.4426950408889634 / (128 ** 0.5)
TRAW = 8.0 / SCALE

EXTRA = 131072
WQBUF = [32768 + 8192, 32768 + 16384, 3 * 8192, 32768 + 24576]

def gen_k1(a: Asm, name, nt=True, prio=False):
    v = a.vr
    a.raw('.p2align 8'); a.raw('.type %s,@function' % name); a.raw(name + ':')
    a.scmp('s_cmp_ge_u32', 's2', 256)
    a.branch('s_cbranch_scc1', 'K1_END')
    a.salu('s_and_b32', 's3', 's2', 7)
    a.salu('s_lshr_b32', 's4', 's2', 3)
    a.salu('s_and_b32', 's%d' % sBLK, 's3', 1)
    a.salu('s_lshr_b32', 's5', 's3', 1)
    a.salu('s_lshl_b32', 's5', 's5', 2)
    a.salu('s_and_b32', 's6', 's4', 3)
    a.salu('s_add_u32', 's%d' % sHP, 's5', 's6')
    a.salu('s_lshr_b32', 's%d' % sB, 's4', 2)
    a.salu('s_mul_i32', 's5', 's%d' % sBLK, 40)
    a.salu('s_add_u32', 's6', 's0', 's5')
    a.salu('s_addc_u32', 's7', 's1', 0)
    a.other('s_load_dwordx8 s[%d:%d], s[6:7], 0' % (sPTR, sPTR + 7))
    a.other('s_load_dwordx2 s[4:5], s[0:1], 96')
    a.valu('v_and_b32', v(LANE), 63, 'v0')
    a.valu('v_lshrrev_b32', v(TMP), 6, 'v0')
    a.rfl(sW, TMP)
    a.salu('s_mov_b32', 's%d' % sC, '0x%08x' % f2u(SCALE))
    a.salu('s_mov_b32', 's%d' % sTC, '0x%08x' % f2u(TRAW))
    a.scmp('s_cmp_ge_u32', 's%d' % sW, 6)
    a.salu('s_cselect_b32', 's%d' % sHS, 1, 0)
    a.salu('s_mul_i32', 's3', 's%d' % sHS, 6)
    a.salu('s_sub_u32', 's%d' % sQG, 's%d' % sW, 's3')
    a.wait(lgkm=0)
    px, pk, pv, pw = sPTR, sPTR + 2, sPTR + 4, sPTR + 6
    a.salu('s_mul_i32', 's3', 's%d' % sB, 196608)
    a.salu('s_add_u32', 's%d' % SRD_X, 's%d' % px, 's3')
    a.salu('s_addc_u32', 's%d' % (SRD_X + 1), 's%d' % (px + 1), 0)
    a.salu('s_mov_b32', 's%d' % (SRD_X + 2), 196608)
    a.salu('s_mov_b32', 's%d' % (SRD_X + 3), '0x00020000')
    a.salu('s_lshl_b32', 's3', 's%d' % sHP, 9)
    a.salu('s_add_u32', 's%d' % SRD_WQ, 's%d' % pw, 's3')
    a.salu('s_addc_u32', 's%d' % (SRD_WQ + 1), 's%d' % (pw + 1), 0)
    a.salu('s_sub_u32', 's%d' % (SRD_WQ + 2), 4194304, 's3')
    a.salu('s_mov_b32', 's%d' % (SRD_WQ + 3), '0x00020000')
    a.salu('s_lshl_b32', 's3', 's%d' % sB, 4)
    a.salu('s_add_u32', 's3', 's3', 's%d' % sHP)
    a.salu('s_lshr_b32', 's6', 's3', 13)
    a.salu('s_lshl_b32', 's3', 's3', 19)
    for srd, p in ((SRD_K, pk), (SRD_V, pv)):
        a.salu('s_add_u32', 's%d' % srd, 's%d' % p, 's3')
        a.salu('s_addc_u32', 's%d' % (srd + 1), 's%d' % (p + 1), 's6')
        a.salu('s_mov_b32', 's%d' % (srd + 2), 524288)
        a.salu('s_mov_b32', 's%d' % (srd + 3), '0x00020000')
    a.salu('s_lshl_b32', 's3', 's%d' % sBLK, 3)
    a.salu('s_add_u32', 's3', 's3', 's%d' % sB)
    a.salu('s_mul_i32', 's3', 's3', 6)
    a.salu('s_add_u32', 's3', 's3', 's%d' % sQG)
    a.salu('s_lshl_b32', 's3', 's3', 5)
    a.salu('s_lshl_b32', 's6', 's%d' % sHP, 1)
    a.salu('s_add_u32', 's3', 's3', 's6')
    a.salu('s_add_u32', 's3', 's3', 's%d' % sHS)
    a.salu('s_lshl_b32', 's3', 's3', 13)
    a.salu('s_add_u32', 's%d' % SRD_O, 's4', 's3')
    a.salu('s_addc_u32', 's%d' % (SRD_O + 1), 's5', 0)
    a.salu('s_mov_b32', 's%d' % (SRD_O + 2), 8192)
    a.salu('s_mov_b32', 's%d' % (SRD_O + 3), '0x00020000')

    R4 = 0; C16 = 1; A1 = 2; A2 = 3; A3 = 4; A4 = 5; A5 = 6
    a.valu('v_lshrrev_b32', v(R4), 4, v(LANE))
    a.valu('v_and_b32', v(C16), 15, v(LANE))
    a.valu('v_lshlrev_b32', v(A1), 2, v(R4))
    a.valu('v_xor_b32', v(A1), v(A1), v(C16))
    a.valu('v_lshlrev_b32', v(A1), 4, v(A1))
    a.valu('v_lshl_add_u32', v(DV), v(R4), 8, v(A1))
    a.salu('s_and_b32', 's3', 's%d' % sW, 3)
    a.salu('s_lshl_b32', 's6', 's3', 2)
    a.valu('v_add_u32', v(A2), 's6', v(R4))
    a.valu('v_xor_b32', v(A2), v(A2), v(C16))
    a.valu('v_lshlrev_b32', v(A2), 4, v(A2))
    a.valu('v_lshl_add_u32', v(DK), v(R4), 8, v(A2))
    a.valu('v_lshl_add_u32', v(A3), v(R4), 13, v(A1))
    a.valu('v_and_b32', v(A4), 3, v(LANE))
    a.valu('v_xor_b32', v(A4), v(A4), v(R4))
    a.valu('v_lshlrev_b32', v(A4), 4, v(A4))
    a.valu('v_lshrrev_b32', v(A5), 2, v(LANE))
    a.valu('v_lshl_add_u32', v(A4), v(A5), 10, v(A4))
    a.scmp('s_cmp_lt_u32', 's%d' % sW, 4)
    a.salu('s_cselect_b64', 'vcc', '-1', '0')
    a.valu('v_cndmask_b32', v(DQ), v(A4), v(A3), 'vcc')
    for j in range(4):
        a.salu('s_cselect_b32', 's%d' % (SRD_Q + j), 's%d' % (SRD_WQ + j), 's%d' % (SRD_X + j))
    a.salu('s_lshr_b32', 's6', 's%d' % sW, 2)
    a.salu('s_and_b32', 's6', 's6', 1)
    a.salu('s_lshl_b32', 's7', 's6', 18)
    a.salu('s_lshl_b32', 's5', 's3', 10)
    a.salu('s_add_u32', 's%d' % sKVS, 's7', 's5')
    a.salu('s_lshl_b32', 's7', 's6', 16)
    a.salu('s_add_u32', 's%d' % sKVM, 's7', 's5')

    a.scmp('s_cmp_lt_u32', 's%d' % sW, 8)
    a.branch('s_cbranch_scc1', 'K1_NOPRO')
    a.cond_begin()
    ntf = nt
    for (isv, tile) in ((0, 0), (1, 0), (0, 1)):
        for h in range(2):
            for e in range(2):
                a.salu('s_add_u32', 'm0', 's5', h * 65536 + (32768 if isv else 0) + tile * 8192 + e * 4096)
                a.salu('s_add_u32', 's%d' % sT, 's5', h * 262144 + tile * 8192 + e * 4096)
                a.dma(DV if isv else DK, SRD_V if isv else SRD_K, 's%d' % sT, ntf)
    a.cond_end()
    a.label('K1_NOPRO', pad=False)

    a.salu('s_lshr_b32', 's3', 's%d' % sW, 1)
    a.salu('s_and_b32', 's4', 's%d' % sW, 1)
    a.salu('s_lshl_b32', 's5', 's4', 17)
    a.salu('s_lshl_b32', 's6', 's3', 8)
    a.salu('s_add_u32', 's5', 's5', 's6')
    a.salu('s_lshl_b32', 's6', 's3', 16)
    a.salu('s_lshl_b32', 's7', 's4', 12)
    a.salu('s_add_u32', 's6', 's6', 's7')
    a.salu('s_sub_u32', 's7', 's%d' % sW, 4)
    a.salu('s_lshl_b32', 's%d' % sT, 's7', 16)
    a.salu('s_lshl_b32', 's%d' % sT2, 's7', 12)
    a.scmp('s_cmp_lt_u32', 's%d' % sW, 4)
    a.salu('s_cselect_b32', 's%d' % sQC, 262144, 64)
    a.salu('s_mov_b32', 's%d' % sT3, 16384)
    a.salu('s_cselect_b32', 's%d' % sT3, 32768, 's%d' % sT3)
    a.salu('s_cselect_b32', 's%d' % sSO, 's5', 's%d' % sT)
    for j in range(1, 4):
        a.salu('s_add_u32', 's%d' % (sSO + j), 's%d' % (sSO + j - 1), 's%d' % sT3)
    for bi in range(4):
        if bi >= 2:
            a.salu('s_add_u32', 's4', 's%d' % sT2, EXTRA + (bi - 2) * 12288)
        else:
            a.salu('s_add_u32', 's4', 's%d' % sT2, bi * 65536 + 16384)
            a.scmp('s_cmp_eq_u32', 's7', 2)
            a.salu('s_cselect_b32', 's4', EXTRA + 24576 + bi * 4096, 's4')
        a.salu('s_add_u32', 's5', 's6', WQBUF[bi])
        a.scmp('s_cmp_lt_u32', 's%d' % sW, 4)
        a.salu('s_cselect_b32', 's%d' % (sQB + bi), 's5', 's4')

    def qload(chunk, lab):
        a.scmp('s_cmp_ge_u32', 's%d' % sW, 7)
        a.branch('s_cbranch_scc1', lab)
        a.cond_begin()
        for j in range(4):
            a.salu('s_add_u32', 'm0', 's%d' % (sQB + (chunk & 3)), j * 1024)
            a.dma(DQ, SRD_Q, 's%d' % (sSO + j))
            a.salu('s_add_u32', 's%d' % (sSO + j), 's%d' % (sSO + j), 's%d' % sQC)
        a.cond_end()
        a.label(lab, pad=False)

    for ch in range(3):
        qload(ch, 'K1_QL%d' % ch)

    LQ = 0; HF = 1; AA = 2; RR = 3; I1 = 4; X1 = 5; X2 = 6; X3 = 7
    a.valu('v_and_b32', v(LQ), 31, v(LANE))
    a.valu('v_lshrrev_b32', v(HF), 5, v(LANE))
    a.valu('v_bfe_u32', v(AA), v(LANE), 4, 1)
    a.valu('v_bfe_u32', v(RR), v(LANE), 2, 2)
    a.valu('v_and_b32', v(I1), 3, v(LANE))
    a.salu('s_lshl_b32', 's3', 's%d' % sHS, 16)
    a.valu('v_and_b32', v(X1), 15, v(LQ))
    a.valu('v_xor_b32', v(X1), v(X1), v(HF))
    a.valu('v_lshlrev_b32', v(X1), 4, v(X1))
    a.valu('v_lshl_add_u32', v(X1), v(LQ), 8, v(X1))
    a.valu('v_add_u32', v(X1), 's3', v(X1))
    for t in range(8):
        a.valu('v_xor_b32', v(KA + t), t * 32, v(X1))
    a.valu('v_lshl_add_u32', v(X1), v(HF), 2, v(RR))
    a.valu('v_lshlrev_b32', v(X1), 8, v(X1))
    a.valu('v_lshl_add_u32', v(X1), v(RR), 6, v(X1))
    a.valu('v_lshl_add_u32', v(X1), v(AA), 5, v(X1))
    a.valu('v_lshl_add_u32', v(X1), v(I1), 3, v(X1))
    a.valu('v_add_u32', v(X1), 's3', v(X1))
    for dt in range(4):
        a.valu('v_xor_b32', v(VA + dt), dt * 64, v(X1))
    WA = S
    XA = S + 4
    a.valu('v_lshl_add_u32', v(X1), v(HF), 3, v(RR))
    a.valu('v_lshlrev_b32', v(X1), 8, v(X1))
    a.valu('v_lshl_add_u32', v(X1), v(RR), 6, v(X1))
    a.valu('v_lshl_add_u32', v(X1), v(AA), 5, v(X1))
    a.valu('v_and_b32', v(X2), 1, v(I1))
    a.valu('v_lshl_add_u32', v(X1), v(X2), 4, v(X1))
    a.valu('v_lshrrev_b32', v(X2), 1, v(I1))
    a.valu('v_lshl_add_u32', v(X1), v(X2), 3, v(X1))
    a.valu('v_add_u32', v(X1), 's3', v(X1))
    for T in range(4):
        a.valu('v_xor_b32', v(WA + T), T * 64, v(X1))
    a.valu('v_bfe_u32', v(X1), v(LQ), 2, 2)
    a.valu('v_xor_b32', v(X1), v(X1), v(HF))
    a.valu('v_lshlrev_b32', v(X1), 4, v(X1))
    a.valu('v_lshl_add_u32', v(X1), v(LQ), 6, v(X1))
    a.salu('s_lshl_b32', 's4', 's%d' % sQG, 11)
    for bi in range(4):
        if bi >= 2:
            a.salu('s_add_u32', 's5', 's4', EXTRA + (bi - 2) * 12288)
        else:
            a.salu('s_add_u32', 's5', 's4', bi * 65536 + 16384)
            a.salu('s_add_u32', 's6', 's4', EXTRA + 24576 + bi * 4096 - 4 * 2048)
            a.scmp('s_cmp_ge_u32', 's%d' % sQG, 4)
            a.salu('s_cselect_b32', 's5', 's6', 's5')
        a.valu('v_add_u32', v(XA + 2 * bi), 's5', v(X1))
        a.valu('v_xor_b32', v(XA + 2 * bi + 1), 32, v(XA + 2 * bi))

    BF = S + 8
    BF = Q
    first = True
    for ch in range(16):
        bi = ch & 3
        allowed = 4 * min(2, 15 - ch)
        lab = 'K1_QW%d' % ch
        a.scmp('s_cmp_ge_u32', 's%d' % sW, 7)
        a.branch('s_cbranch_scc1', lab)
        a.cond_begin()
        a.wait(vm=allowed)
        a.cond_end()
        a.label(lab, pad=False)
        a.wait(lgkm=0)
        a.barrier()
        if ch + 3 <= 15:
            qload(ch + 3, 'K1_QL%d' % (ch + 3))
        for s in range(2):
            a.ds_read128(BF + 4 * s, XA + 2 * bi + s)
            for T in range(4):
                for e in range(2):
                    a.ds_read_tr(POOL + (s * 4 + T) * 4 + 2 * e, WA + T, WQBUF[bi] + (16 * s + 4 * e) * 256)
        cnt = 0
        for s in range(2):
            for T in range(4):
                done_needed = s * 9 + 1 + 2 * (T + 1)
                a.wait(lgkm=min(15, 18 - done_needed))
                a.mfma32(O + 16 * T, POOL + (s * 4 + T) * 4, BF + 4 * s, C=('same' if not (ch == 0 and s == 0) else 0))
    for T in range(4):
        for u in range(2):
            for i in range(4):
                a.valu('v_cvt_pk_bf16_f32', v(Q + (2 * T + u) * 4 + i), v(O + 16 * T + 8 * u + 2 * i), v(O + 16 * T + 8 * u + 2 * i + 1))
    for r in range(64):
        a.valu('v_mov_b32', v(O + r), 0)
    a.valu('v_mov_b32', v(MRUN), '0x%08x' % f2u(-1e30))
    a.valu('v_mov_b32', v(THR), '0x%08x' % f2u(-1e30))
    a.valu('v_mov_b32', v(NEGMC), 0)
    a.valu('v_mov_b32', v(L0), 0)
    a.valu('v_mov_b32', v(L1), 0)
    a.wait(vm=0, lgkm=0)
    a.barrier()

    def kvload(kt, kslot, vt, vslot, lab, static=True):
        a.scmp('s_cmp_ge_u32', 's%d' % sW, 8)
        a.branch('s_cbranch_scc1', lab)
        a.cond_begin()
        if vt is not None:
            for e in range(2):
                a.salu('s_add_u32', 'm0', 's%d' % sKVM, 32768 + vslot * 8192 + e * 4096)
                a.salu('s_add_u32', 's%d' % sT, 's%d' % sVSO, e * 4096)
                a.dma(DV, SRD_V, 's%d' % sT, nt)
        if kt is not None:
            for e in range(2):
                a.salu('s_add_u32', 'm0', 's%d' % sKVM, kslot * 8192 + e * 4096)
                a.salu('s_add_u32', 's%d' % sT, 's%d' % sKSO, e * 4096)
                a.dma(DK, SRD_K, 's%d' % sT, nt)
        a.cond_end()
        a.label(lab, pad=False)
        if vt is not None: a.salu('s_add_u32', 's%d' % sVSO, 's%d' % sVSO, 8192)
        if kt is not None: a.salu('s_add_u32', 's%d' % sKSO, 's%d' % sKSO, 8192)

    a.salu('s_add_u32', 's%d' % sVSO, 's%d' % sKVS, 1 * 8192)
    a.salu('s_add_u32', 's%d' % sKSO, 's%d' % sKVS, 2 * 8192)
    kvload(2, 2, 1, 1, 'K1_P1')
    kvload(3, 3, 2, 2, 'K1_P2')
    for t in range(8):
        a.ds_read128(POOL + 4 * t, KA + t, 0)
    a.wait(lgkm=0)

    slow_paths = []
    def stage(j, tag, kt, vt, vm_allowed, last=False):
        a.barrier()
        kvload(0 if kt else None, j, 0 if vt else None, (j + 3) & 3, 'K1_L' + tag)
        for t in range(8):
            a.mfma32(S, POOL + 4 * t, Q + 4 * t, C=(0 if t == 0 else 'same'))
            u = t >> 2; dt = t & 3
            for e in range(2):
                a.ds_read_tr(POOL + 4 * t + 2 * e, VA + dt, 32768 + j * 8192 + (16 * u + 8 * e) * 256)
        a.valu('v_max3_f32', v(T0), v(S), v(S + 1), v(S + 2))
        a.valu('v_max3_f32', v(T1), v(S + 3), v(S + 4), v(S + 5))
        a.valu('v_max3_f32', v(T0), v(T0), v(S + 6), v(S + 7))
        a.valu('v_max3_f32', v(T1), v(T1), v(S + 8), v(S + 9))
        a.valu('v_max3_f32', v(T0), v(T0), v(S + 10), v(S + 11))
        a.valu('v_max3_f32', v(T1), v(T1), v(S + 12), v(S + 13))
        a.valu('v_max3_f32', v(T0), v(T0), v(S + 14), v(S + 15))
        a.valu('v_max_f32', v(T0), v(T0), v(T1))
        a.valu('v_cmp_gt_f32', 'vcc', v(T0), v(THR))
        a.branch('s_cbranch_vccnz', 'K1_SLOW' + tag)
        a.label('K1_RET' + tag, pad=False)
        slow_paths.append(tag)
        for i in range(16):
            a.valu('v_fma_f32', v(S + i), v(S + i), 's%d' % sC, v(NEGMC))
        for i in range(16):
            a.valu('v_exp_f32', v(S + i), v(S + i), trans=True)
        for i in range(0, 16, 2):
            a.valu('v_add_f32', v(L0), v(L0), v(S + i))
            a.valu('v_add_f32', v(L1), v(L1), v(S + i + 1))
            a.valu('v_cvt_pk_bf16_f32', v(S + i // 2), v(S + i), v(S + i + 1))
        a.wait(lgkm=0)
        for t in range(8):
            u = t >> 2; dt = t & 3
            a.mfma32(O + 16 * dt, POOL + 4 * t, S + 4 * u)
            if not last:
                a.ds_read128(POOL + 4 * t, KA + t, ((j + 1) & 3) * 8192)
        if not last:
            lab = 'K1_W' + tag
            a.scmp('s_cmp_ge_u32', 's%d' % sW, 8)
            a.branch('s_cbranch_scc1', lab)
            a.cond_begin()
            a.wait(vm=vm_allowed)
            a.cond_end()
            a.label(lab, pad=False)
            a.wait(lgkm=0)

    a.salu('s_mov_b32', 's%d' % sIT, 0)
    a.label('K1_LOOP')
    for j in range(4):
        stage(j, 'a%d' % j, True, True, 8)
    a.salu('s_add_u32', 's%d' % sIT, 's%d' % sIT, 1)
    a.scmp('s_cmp_lt_u32', 's%d' % sIT, 7)
    a.branch('s_cbranch_scc1', 'K1_LOOP')
    stage(0, 'b0', False, True, 6)
    stage(1, 'b1', False, False, 2)
    stage(2, 'b2', False, False, 0)
    stage(3, 'b3', False, False, 0, last=True)
    a.valu('v_add_f32', v(L0), v(L0), v(L1))
    a.valu('v_mov_b32', v(T0), v(L0))
    a.ins('v_permlane32_swap_b32 v%d, v%d' % (L0, T0), 'perm', [L0, T0], [L0, T0])
    a.valu('v_add_f32', v(L0), v(L0), v(T0))
    a.valu('v_rcp_f32', v(L0), v(L0), trans=True)
    a.valu('v_lshlrev_b32', v(T1), 4, v(LANE))
    a.valu('v_add_u32', v(TMP), 4096, v(T1))
    for dt in range(4):
        for r in range(16):
            a.valu('v_mul_f32', v(O + 16 * dt + r), v(O + 16 * dt + r), v(L0))
        for u in range(2):
            f = dt * 2 + u
            d = POOL + f * 4
            for i in range(4):
                a.valu('v_cvt_pk_bf16_f32', v(d + i), v(O + 16 * dt + 8 * u + 2 * i), v(O + 16 * dt + 8 * u + 2 * i + 1))
            a.bstore128(d, T1 if f < 4 else TMP, SRD_O, '0', (f & 3) * 1024)
    a.label('K1_END')
    a.other('s_endpgm')
    for tag in slow_paths:
        a.label('K1_SLOW' + tag)
        a.valu('v_mov_b32', v(T1), v(T0))
        a.ins('v_permlane32_swap_b32 v%d, v%d' % (T0, T1), 'perm', [T0, T1], [T0, T1])
        a.valu('v_max3_f32', v(T0), v(T0), v(T1), v(MRUN))
        a.valu('v_sub_f32', v(T1), v(MRUN), v(T0))
        a.valu('v_mul_f32', v(T1), 's%d' % sC, v(T1))
        a.valu('v_exp_f32', v(T1), v(T1), trans=True)
        a.valu('v_mov_b32', v(MRUN), v(T0))
        a.valu('v_add_f32', v(THR), 's%d' % sTC, v(T0))
        a.valu('v_mul_f32', v(NEGMC), 's%d' % sC, v(T0))
        a.valu('v_sub_f32', v(NEGMC), 0, v(NEGMC))
        a.valu('v_mul_f32', v(L0), v(L0), v(T1))
        a.valu('v_mul_f32', v(L1), v(L1), v(T1))
        for r in range(64):
            a.valu('v_mul_f32', v(O + r), v(O + r), v(T1))
        a.nop_all()
        a.branch('s_branch', 'K1_RET' + tag)

def kd(name, nv, ns=96):
    return '''.section .rodata,"a"
.p2align 6
.amdhsa_kernel %s
  .amdhsa_next_free_vgpr %d
  .amdhsa_next_free_sgpr %d
  .amdhsa_accum_offset %d
  .amdhsa_group_segment_fixed_size 0
  .amdhsa_kernarg_size 104
  .amdhsa_user_sgpr_count 2
  .amdhsa_user_sgpr_kernarg_segment_ptr 1
  .amdhsa_system_sgpr_workgroup_id_x 1
.end_amdhsa_kernel
''' % (name, nv, ns, (nv + 3) // 4 * 4)
```

```python
from asmlib import Asm
ACC = 0
OF = 96
WF = 192
WA = 208
DW = 210; VO = 211; LANE = 212; T0 = 213; T1 = 214; T2 = 215; RA = 216; T3 = 217
NV = 220
SRD_O = 8; SRD_W = 12; SRD_OUT = 16
sW = 20; sBLK = 21; sB = 22; sQH = 23; sNT = 24; sM0 = 25; sWSO = 26; sT = 27; sOSO = 28

def gen_k2(a: Asm, name):
    v = a.vr
    a.raw('.p2align 8'); a.raw('.type %s,@function' % name); a.raw(name + ':')
    a.scmp('s_cmp_ge_u32', 's2', 256)
    a.branch('s_cbranch_scc1', 'K2_END')
    a.salu('s_and_b32', 's3', 's2', 7)
    a.salu('s_lshr_b32', 's4', 's2', 3)
    a.salu('s_and_b32', 's%d' % sBLK, 's3', 1)
    a.salu('s_lshr_b32', 's5', 's3', 1)
    a.salu('s_lshl_b32', 's5', 's5', 1)
    a.salu('s_and_b32', 's6', 's4', 1)
    a.salu('s_add_u32', 's%d' % sB, 's5', 's6')
    a.salu('s_bfe_u32', 's%d' % sQH, 's4', '0x10001')
    a.salu('s_lshr_b32', 's%d' % sNT, 's4', 2)
    a.salu('s_mul_i32', 's5', 's%d' % sBLK, 40)
    a.salu('s_add_u32', 's6', 's0', 's5')
    a.salu('s_addc_u32', 's7', 's1', 0)
    a.other('s_load_dwordx2 s[30:31], s[6:7], 32')
    a.other('s_load_dwordx2 s[32:33], s[0:1], 80')
    a.other('s_load_dwordx2 s[34:35], s[0:1], 96')
    a.valu('v_and_b32', v(LANE), 63, 'v0')
    a.valu('v_lshrrev_b32', v(T0), 6, 'v0')
    a.rfl(sW, T0)
    a.wait(lgkm=0)
    a.salu('s_lshl_b32', 's3', 's%d' % sBLK, 3)
    a.salu('s_add_u32', 's3', 's3', 's%d' % sB)
    a.salu('s_mul_i32', 's3', 's3', 6)
    a.salu('s_mul_i32', 's4', 's%d' % sQH, 3)
    a.salu('s_add_u32', 's3', 's3', 's4')
    a.salu('s_lshl_b32', 's3', 's3', 18)
    a.salu('s_add_u32', 's%d' % SRD_O, 's34', 's3')
    a.salu('s_addc_u32', 's%d' % (SRD_O + 1), 's35', 0)
    a.salu('s_mov_b32', 's%d' % (SRD_O + 2), 3 * 262144)
    a.salu('s_mov_b32', 's%d' % (SRD_O + 3), '0x00020000')
    a.salu('s_lshl_b32', 's3', 's%d' % sNT, 7)
    a.salu('s_add_u32', 's%d' % SRD_W, 's30', 's3')
    a.salu('s_addc_u32', 's%d' % (SRD_W + 1), 's31', 0)
    a.salu('s_sub_u32', 's%d' % (SRD_W + 2), 4194304, 's3')
    a.salu('s_mov_b32', 's%d' % (SRD_W + 3), '0x00020000')
    a.salu('s_mul_i32', 's3', 's%d' % sB, 192)
    a.salu('s_mul_i32', 's4', 's%d' % sQH, 96)
    a.salu('s_add_u32', 's3', 's3', 's4')
    a.salu('s_lshl_b32', 's3', 's3', 11)
    a.salu('s_lshl_b32', 's4', 's%d' % sBLK, 10)
    a.salu('s_add_u32', 's3', 's3', 's4')
    a.salu('s_lshl_b32', 's4', 's%d' % sNT, 7)
    a.salu('s_add_u32', 's3', 's3', 's4')
    a.salu('s_add_u32', 's%d' % SRD_OUT, 's32', 's3')
    a.salu('s_addc_u32', 's%d' % (SRD_OUT + 1), 's33', 0)
    a.salu('s_sub_u32', 's%d' % (SRD_OUT + 2), 8 * 192 * 2048, 's3')
    a.salu('s_mov_b32', 's%d' % (SRD_OUT + 3), '0x00020000')
    a.salu('s_lshl_b32', 's%d' % sM0, 's%d' % sW, 14)
    a.salu('s_lshl_b32', 's%d' % sWSO, 's%d' % sW, 19)
    a.salu('s_lshl_b32', 's%d' % sOSO, 's%d' % sW, 15)
    a.valu('v_bfe_u32', v(T0), v(LANE), 4, 1)
    a.valu('v_lshlrev_b32', v(T0), 1, v(T0))
    a.valu('v_and_b32', v(T1), 7, v(LANE))
    a.valu('v_xor_b32', v(T0), v(T0), v(T1))
    a.valu('v_lshlrev_b32', v(T0), 4, v(T0))
    a.valu('v_lshrrev_b32', v(T1), 3, v(LANE))
    a.valu('v_lshl_add_u32', v(DW), v(T1), 10, v(T0))
    a.valu('v_lshlrev_b32', v(VO), 4, v(LANE))
    a.valu('v_lshrrev_b32', v(T0), 5, v(LANE))
    a.valu('v_bfe_u32', v(T1), v(LANE), 2, 2)
    a.valu('v_lshl_add_u32', v(T0), v(T0), 2, v(T1))
    a.valu('v_lshlrev_b32', v(T0), 7, v(T0))
    a.valu('v_lshrrev_b32', v(T1), 1, v(T1))
    a.valu('v_lshl_add_u32', v(T0), v(T1), 5, v(T0))
    a.valu('v_bfe_u32', v(T1), v(LANE), 4, 1)
    a.valu('v_lshl_add_u32', v(T0), v(T1), 4, v(T0))
    a.valu('v_and_b32', v(T1), 1, v(LANE))
    a.valu('v_lshl_add_u32', v(T0), v(T1), 6, v(T0))
    a.valu('v_bfe_u32', v(T1), v(LANE), 1, 1)
    a.valu('v_lshl_add_u32', v(T0), v(T1), 3, v(T0))
    a.valu('v_add_u32', v(WA), 's%d' % sM0, v(T0))
    a.valu('v_xor_b32', v(WA + 1), 32, v(WA))

    def issue(c):
        sl = c & 3
        for j in range(4):
            a.salu('s_add_u32', 'm0', 's%d' % sM0, sl * 4096 + j * 1024)
            a.salu('s_add_u32', 's%d' % sT, 's%d' % sWSO, (c * 32 + j * 8) * 1024)
            a.dma(DW, SRD_W, 's%d' % sT)
        for qt in range(3):
            a.salu('s_add_u32', 's%d' % sT, 's%d' % sOSO, qt * 262144 + c * 2048)
            for u2 in range(2):
                a.bload128(OF + sl * 24 + (qt * 2 + u2) * 4, VO, SRD_O, 's%d' % sT, u2 * 1024)
    for c in range(3):
        issue(c)
    for c in range(16):
        sl = c & 3
        if c + 3 < 16:
            issue(c + 3)
        rem = min(3, 15 - c)
        a.wait(vm=10 * rem)
        for u2 in range(2):
            for nt in range(2):
                for e in range(2):
                    a.ds_read_tr(WF + (nt * 2 + u2) * 4 + 2 * e, WA + nt, sl * 4096 + (16 * u2 + 8 * e) * 128)
        for u2 in range(2):
            a.wait(lgkm=(4 if u2 == 0 else 0))
            for qt in range(3):
                for nt in range(2):
                    a.mfma32(ACC + (qt * 2 + nt) * 16, WF + (nt * 2 + u2) * 4, OF + sl * 24 + (qt * 2 + u2) * 4, C=(0 if (c == 0 and u2 == 0) else 'same'))
    a.barrier()
    a.valu('v_lshlrev_b32', v(RA), 4, v(LANE))
    a.salu('s_mul_i32', 's3', 's%d' % sW, 12288)
    a.valu('v_add_u32', v(T0), 's3', v(RA))
    a.salu('s_xor_b32', 's4', 's%d' % sW, 4)
    a.salu('s_mul_i32', 's4', 's4', 12288)
    a.valu('v_add_u32', v(T1), 's4', v(RA))
    a.scmp('s_cmp_lt_u32', 's%d' % sW, 4)
    a.branch('s_cbranch_scc0', 'K2_P1B')
    for r in range(0, 48, 4):
        a.ds_write128(T0, ACC + 48 + r, (r // 4) * 1024)
    a.branch('s_branch', 'K2_P1C')
    a.label('K2_P1B')
    for r in range(0, 48, 4):
        a.ds_write128(T0, ACC + r, (r // 4) * 1024)
    for r in range(48):
        a.valu('v_mov_b32', v(ACC + r), v(ACC + 48 + r))
    a.label('K2_P1C')
    a.wait(lgkm=0)
    a.barrier()
    for r in range(0, 48, 4):
        a.ds_read128(OF + r, T1, (r // 4) * 1024)
    a.wait(lgkm=0)
    for r in range(48):
        a.valu('v_add_f32', v(ACC + r), v(ACC + r), v(OF + r))
    a.barrier()
    for r in range(0, 48, 4):
        a.ds_write128(T0, ACC + r, (r // 4) * 1024)
    a.wait(lgkm=0)
    a.barrier()
    a.salu('s_and_b32', 's3', 's%d' % sW, 3)
    a.scmp('s_cmp_eq_u32', 's3', 3)
    a.branch('s_cbranch_scc1', 'K2_END')
    a.salu('s_and_b32', 's4', 's%d' % sW, 4)
    a.salu('s_mul_i32', 's4', 's4', 12288)
    a.salu('s_lshl_b32', 's5', 's3', 12)
    a.salu('s_add_u32', 's4', 's4', 's5')
    a.valu('v_add_u32', v(T1), 's4', v(RA))
    for ww in range(3):
        pass
    for ww in range(4):
        for r in range(0, 16, 4):
            a.ds_read128(OF + ww * 16 + r, T1, ww * 12288 + (r // 4) * 1024)
    a.wait(lgkm=0)
    for r in range(16):
        a.valu('v_add_f32', v(OF + r), v(OF + r), v(OF + 16 + r))
        a.valu('v_add_f32', v(OF + 32 + r), v(OF + 32 + r), v(OF + 48 + r))
        a.valu('v_add_f32', v(OF + r), v(OF + r), v(OF + 32 + r))
    for i in range(8):
        a.valu('v_cvt_pk_bf16_f32', v(OF + 64 + i), v(OF + 2 * i), v(OF + 2 * i + 1))
    a.salu('s_lshr_b32', 's4', 's%d' % sW, 2)
    a.salu('s_mul_i32', 's4', 's4', 3)
    a.salu('s_add_u32', 's4', 's4', 's3')
    a.salu('s_lshr_b32', 's5', 's4', 1)
    a.salu('s_and_b32', 's6', 's4', 1)
    a.salu('s_lshl_b32', 's5', 's5', 16)
    a.salu('s_lshl_b32', 's6', 's6', 5)
    a.salu('s_add_u32', 's5', 's5', 's6')
    a.valu('v_and_b32', v(T0), 31, v(LANE))
    a.valu('v_lshlrev_b32', v(T0), 11, v(T0))
    a.valu('v_lshrrev_b32', v(T1), 5, v(LANE))
    a.valu('v_lshl_add_u32', v(T0), v(T1), 6, v(T0))
    a.bstore128(OF + 64, T0, SRD_OUT, 's5', 0)
    a.bstore128(OF + 68, T0, SRD_OUT, 's5', 16)
    a.label('K2_END')
    a.other('s_endpgm')
```

```python
import sys
from asmlib import Asm
import k1, k2
hdr = open('concat_heads__mha_block_cached__mha_block_cached__near_ridge.s.ref').read().split('\n')
hdr = [l for l in hdr if l.startswith(';') and '@launch' not in l and 'Override launch' not in l and 'grid=ceil' not in l]
a = Asm()
for l in hdr: a.raw(l)
a.raw('; @launch kernel=attn_kernel grid=(256,1,1) block=(768,1,1) lds=163840')
a.raw('; @launch kernel=oproj_kernel grid=(256,1,1) block=(512,1,1) lds=131072')
a.raw('.amdgcn_target "amdgcn-amd-amdhsa--gfx950"')
a.raw('.text')
a.raw('.globl attn_kernel')
k1.gen_k1(a, 'attn_kernel', stamps=('stamps' in sys.argv))
a.reset_haz()
a.raw('.globl oproj_kernel')
k2.gen_k2(a, 'oproj_kernel')
a.raw(k1.kd('attn_kernel', k1.NV))
a.raw(k1.kd('oproj_kernel', k2.NV))
out = sys.argv[1] if len(sys.argv) > 1 else 'concat_heads__mha_block_cached__mha_block_cached__near_ridge.s'
open(out, 'w').write(a.text())
print('nops', a.nnop, 'lines', len(a.lines))
```

```python
import re

class Asm:
    def __init__(self):
        self.lines = []
        self.idx = 0
        self.reset_haz()
        self.nnop = 0
        self.ldsq = []
        self.vmq = []

    def reset_haz(self):
        self.valu_w = {}
        self.trans_w = {}
        self.mfma_w = {}
        self.mfma_c = {}
        self.store_r = {}
        self.sgpr_valu_w = {}
        self.m0_w = -100

    def raw(self, text):
        self.lines.append(text)

    def comment(self, text):
        self.lines.append('    ; ' + text)

    def label(self, name, pad=True):
        if pad:
            self.nop_all()
        self.lines.append(name + ':')

    def nop_all(self):
        need = 0
        for r, (i, p, _, _) in self.mfma_w.items():
            need = max(need, self._mf(p) - (self.idx - i - 1))
        for r, i in self.valu_w.items():
            need = max(need, 2 - (self.idx - i - 1))
        for r, i in self.sgpr_valu_w.items():
            need = max(need, 5 - (self.idx - i - 1))
        need = max(need, 1 - (self.idx - self.m0_w - 1))
        self._nop(need)
        self.reset_haz()

    @staticmethod
    def _mf(p):
        return {2: 5, 4: 8, 8: 12, 16: 20}[p]
    @staticmethod
    def _mc(p):
        return {2: 4, 4: 6, 8: 10, 16: 18}[p]
    @staticmethod
    def _war(p):
        return {2: 1, 4: 3, 8: 7, 16: 15}[p]

    def _nop(self, n):
        while n > 0:
            k = min(n, 16)
            self.lines.append('    s_nop %d' % (k - 1))
            self.idx += k
            self.nnop += k
            n -= k

    def _need(self, last, ws):
        return ws - (self.idx - last - 1)

    def ins(self, text, kind, vdef=(), vuse=(), sdef=(), suse=(), mf=None):
        need = 0
        vdef = list(vdef); vuse = list(vuse)
        if kind in ('valu', 'trans', 'perm', 'rfl'):
            for r in vdef + vuse:
                if r in self.mfma_w:
                    i, p, _, _ = self.mfma_w[r]
                    need = max(need, self._need(i, self._mf(p)))
            for r in vdef:
                if r in self.mfma_c:
                    i, p = self.mfma_c[r]
                    need = max(need, self._need(i, self._war(p)))
                if r in self.store_r:
                    need = max(need, self._need(self.store_r[r], 2))
            for r in vuse:
                if r in self.trans_w:
                    need = max(need, self._need(self.trans_w[r], 1))
            for s in suse:
                if s in self.sgpr_valu_w:
                    need = max(need, self._need(self.sgpr_valu_w[s], 2))
            if kind == 'perm':
                for r in vdef + vuse:
                    if r in self.valu_w:
                        need = max(need, self._need(self.valu_w[r], 2))
            if kind == 'rfl':
                for r in vuse:
                    if r in self.valu_w:
                        need = max(need, self._need(self.valu_w[r], 1))
        elif kind == 'mfma':
            p, A, B, C, D = mf
            for r in list(A) + list(B) + list(C or []):
                if r in self.valu_w:
                    need = max(need, self._need(self.valu_w[r], 2))
            for r in list(A) + list(B):
                if r in self.mfma_w:
                    i, pp, _, _ = self.mfma_w[r]
                    need = max(need, self._need(i, self._mf(pp)))
            if C:
                for r in C:
                    if r in self.mfma_w:
                        i, pp, ds, dl = self.mfma_w[r]
                        if not (ds == C[0] and dl == len(C) and pp == p):
                            need = max(need, self._need(i, self._mc(pp)))
            for r in D:
                if r in self.mfma_w and not (C and r in C):
                    i, pp, ds, dl = self.mfma_w[r]
                    need = max(need, self._need(i, self._mc(pp)))
        elif kind in ('vmem', 'store', 'ds', 'dma'):
            for r in vdef + vuse:
                if r in self.mfma_w:
                    i, p, _, _ = self.mfma_w[r]
                    need = max(need, self._need(i, self._mf(p)))
            for r in vuse:
                if r in self.trans_w:
                    need = max(need, self._need(self.trans_w[r], 1))
            for s in suse:
                if s in self.sgpr_valu_w:
                    need = max(need, self._need(self.sgpr_valu_w[s], 5))
            if kind == 'dma':
                need = max(need, self._need(self.m0_w, 1))
        elif kind == 'salu':
            for s in suse:
                if s in self.sgpr_valu_w:
                    need = max(need, self._need(self.sgpr_valu_w[s], 2))
        self._nop(need)
        self.lines.append('    ' + text)
        me = self.idx
        self.idx += 1
        if kind in ('valu', 'trans', 'perm', 'rfl'):
            for r in vdef:
                self.valu_w[r] = me
                self.mfma_w.pop(r, None)
                if kind == 'trans':
                    self.trans_w[r] = me
                else:
                    self.trans_w.pop(r, None)
            for s in sdef:
                self.sgpr_valu_w[s] = me
        elif kind == 'mfma':
            p, A, B, C, D = mf
            for r in D:
                self.mfma_w[r] = (me, p, D[0], len(D))
                self.valu_w.pop(r, None)
            for r in (C or []):
                self.mfma_c[r] = (me, p)
        elif kind == 'store':
            for r in vuse:
                self.store_r[r] = me
        elif kind in ('vmem', 'ds'):
            for r in vdef:
                self.valu_w.pop(r, None); self.trans_w.pop(r, None)
        elif kind == 'salu':
            for s in sdef:
                self.sgpr_valu_w.pop(s, None)
                if s == 'm0':
                    self.m0_w = me

    @staticmethod
    def vr(a, n=1):
        return 'v%d' % a if n == 1 else 'v[%d:%d]' % (a, a + n - 1)
    @staticmethod
    def sr(a, n=1):
        return 's%d' % a if n == 1 else 's[%d:%d]' % (a, a + n - 1)

    def _ops(self, ops):
        v = []; s = []
        for o in ops:
            o = str(o).strip().lstrip('-')
            m = re.fullmatch(r'v(\d+)', o)
            if m: v.append(int(m.group(1))); continue
            m = re.fullmatch(r'v\[(\d+):(\d+)\]', o)
            if m: v += list(range(int(m.group(1)), int(m.group(2)) + 1)); continue
            m = re.fullmatch(r's(\d+)', o)
            if m: s.append(int(m.group(1))); continue
            m = re.fullmatch(r's\[(\d+):(\d+)\]', o)
            if m: s += list(range(int(m.group(1)), int(m.group(2)) + 1)); continue
            if o in ('vcc', 'm0'):
                s.append(o)
        return v, s

    def valu(self, op, dst, *src, trans=False, rmw=False):
        dv, ds_ = self._ops([dst]); uv, us = self._ops(src)
        if rmw: uv = uv + dv
        self.ins('%s %s, %s' % (op, dst, ', '.join(str(x) for x in src)), 'trans' if trans else 'valu', dv, uv, ds_, us)

    def salu(self, op, dst, *src):
        _, ds_ = self._ops([dst]); _, us = self._ops(src)
        self.ins('%s %s, %s' % (op, dst, ', '.join(str(x) for x in src)) if src else '%s %s' % (op, dst), 'salu', (), (), ds_, us)

    def scmp(self, op, a, b):
        _, us = self._ops([a, b])
        self.ins('%s %s, %s' % (op, a, b), 'salu', (), (), (), us)

    def other(self, text):
        self.ins(text, 'other')

    def rfl(self, sdst, vsrc):
        self.ins('v_readfirstlane_b32 s%d, v%d' % (sdst, vsrc), 'rfl', (), [vsrc], [sdst], ())

    def mfma32(self, D, A, B, C='same'):
        Dr = list(range(D, D + 16)); Ar = list(range(A, A + 4)); Br = list(range(B, B + 4))
        if C == 'same':
            Cr = Dr; ct = 'v[%d:%d]' % (D, D + 15)
        else:
            Cr = None; ct = '0'
        self.ins('v_mfma_f32_32x32x16_bf16 v[%d:%d], v[%d:%d], v[%d:%d], %s' % (D, D + 15, A, A + 3, B, B + 3, ct), 'mfma', mf=(8, Ar, Br, Cr, Dr))

    def lds_need(self, tags):
        last = -1
        for i, t in enumerate(self.ldsq):
            if t in tags: last = i
        if last < 0: return
        n = len(self.ldsq) - 1 - last
        self.wait(lgkm=min(n, 15))
        if n <= 15:
            self.ldsq = self.ldsq[last + 1:]
    def vm_need(self, tags, lgkm0=False):
        last = -1
        for i, t in enumerate(self.vmq):
            if t in tags: last = i
        if last < 0:
            if lgkm0: self.wait(lgkm=0)
            return
        n = len(self.vmq) - 1 - last
        self.wait(vm=n, lgkm=(0 if lgkm0 else None))
        self.vmq = self.vmq[last + 1:]
    def lds_reset(self):
        self.ldsq = []
    def ds_read128(self, dst, addr, off=0, tag=None):
        self.ldsq.append(tag)
        self.ins('ds_read_b128 v[%d:%d], v%d offset:%d' % (dst, dst + 3, addr, off), 'ds', range(dst, dst + 4), [addr])
    def ds_read_tr(self, dst, addr, off=0, tag=None):
        self.ldsq.append(tag)
        self.ins('ds_read_b64_tr_b16 v[%d:%d], v%d offset:%d' % (dst, dst + 1, addr, off), 'ds', range(dst, dst + 2), [addr])
    def ds_write128(self, addr, src, off=0):
        self.ins('ds_write_b128 v%d, v[%d:%d] offset:%d' % (addr, src, src + 3, off), 'store', (), [addr] + list(range(src, src + 4)))
    def ds_read32(self, dst, addr, off=0):
        self.ins('ds_read_b32 v%d, v%d offset:%d' % (dst, addr, off), 'ds', [dst], [addr])
    def ds_write32(self, addr, src, off=0):
        self.ins('ds_write_b32 v%d, v%d offset:%d' % (addr, src, off), 'store', (), [addr, src])

    def dma(self, voff, srd, soff, nt=False, tag=None):
        self.vmq.append(tag)
        self.ins('buffer_load_dwordx4 v%d, s[%d:%d], %s offen%s lds' % (voff, srd, srd + 3, soff, (nt if isinstance(nt, str) else ' nt') if nt else ''), 'dma', (), [voff], (), list(range(srd, srd + 4)) + self._ops([soff])[1])
    def bload128(self, dst, voff, srd, soff='0', off=0, extra=''):
        self.ins('buffer_load_dwordx4 v[%d:%d], v%d, s[%d:%d], %s offen offset:%d%s' % (dst, dst + 3, voff, srd, srd + 3, soff, off, extra), 'vmem', range(dst, dst + 4), [voff], (), list(range(srd, srd + 4)) + self._ops([soff])[1])
    def bstore128(self, src, voff, srd, soff='0', off=0, extra=''):
        self.ins('buffer_store_dwordx4 v[%d:%d], v%d, s[%d:%d], %s offen offset:%d%s' % (src, src + 3, voff, srd, srd + 3, soff, off, extra), 'store', (), [voff] + list(range(src, src + 4)), (), list(range(srd, srd + 4)) + self._ops([soff])[1])
    def bstore64(self, src, voff, srd, soff='0', off=0, extra=''):
        self.ins('buffer_store_dwordx2 v[%d:%d], v%d, s[%d:%d], %s offen offset:%d%s' % (src, src + 1, voff, srd, srd + 3, soff, off, extra), 'store', (), [voff] + list(range(src, src + 2)), (), list(range(srd, srd + 4)) + self._ops([soff])[1])
    def bstore32(self, src, voff, srd, soff='0', off=0, extra=''):
        self.ins('buffer_store_dword v%d, v%d, s[%d:%d], %s offen offset:%d%s' % (src, voff, srd, srd + 3, soff, off, extra), 'store', (), [voff, src], (), list(range(srd, srd + 4)) + self._ops([soff])[1])

    def wait(self, vm=None, lgkm=None):
        t = 's_waitcnt'
        if vm is not None: t += ' vmcnt(%d)' % vm
        if lgkm is not None: t += ' lgkmcnt(%d)' % lgkm
        if lgkm == 0: self.ldsq = []
        self.other(t)
    def barrier(self):
        self.other('s_barrier')
    def branch(self, op, lab):
        self.other('%s %s' % (op, lab))
    def cond_begin(self):
        self._cond_idx = self.idx
    def cond_end(self):
        inside = self.idx - self._cond_idx
        self.idx = self._cond_idx
        self.m0_w = min(self.m0_w, self.idx - 1)
    def text(self):
        return '\n'.join(self.lines) + '\n'
```

```python
from asmlib import Asm
import struct

def f2u(x): return struct.unpack('<I', struct.pack('<f', x))[0]

O = 0
Q = 64
S = 96
POOL = 112
KA = 144
VA = 152
MRUN = 156; THR = 157; NEGMC = 158; L0 = 159; L1 = 160; T0 = 161; T1 = 162
DK = 163; DV = 164; DQ = 165; LANE = 166; TMP = 167
NV = 168
WA = S
XA = S + 4
DX = S + 12
AF = [POOL, Q]
BFR = [KA, KA + 8]

SRD_X = 8; SRD_WQ = 12; SRD_K = 16; SRD_V = 20; SRD_O = 24
sW = 28; sHS = 29; sQG = 30; sC = 31
sWQB = 32
sWQS = 33
sXS = 34
sXB = 36
sCHW = 40; sCHX = 41
sKVS = 45; sKVM = 46; sKSO = 47; sVSO = 48; sT = 49; sIT = 50
sPTR = 56
sBLK = 64; sB = 65; sHP = 66; sTC = 67; sSUB = 68; sP5 = 69

SCALE = 1.4426950408889634 / (128 ** 0.5)
TRAW = 8.0 / SCALE
EXTRA = 131072
WQBUF = [32768 + 8192, 32768 + 16384, 3 * 8192, 32768 + 24576]

def gen_k1(a: Asm, name, nt=True, stamps=False, depth=2, spread=True, **dbg):
    v = a.vr
    nst = [0]
    def stamp():
        if not stamps: return
        a.other('s_memrealtime s[%d:%d]' % (70 + 2 * nst[0], 71 + 2 * nst[0]))
        a.other('s_memtime s[%d:%d]' % (84 + 2 * nst[0], 85 + 2 * nst[0]))
        nst[0] += 1
    a.raw('.p2align 8'); a.raw('.type %s,@function' % name); a.raw(name + ':')
    a.scmp('s_cmp_ge_u32', 's2', 256)
    a.branch('s_cbranch_scc1', 'K1_END')
    stamp()
    a.salu('s_and_b32', 's3', 's2', 7)
    a.salu('s_lshr_b32', 's4', 's2', 3)
    a.salu('s_and_b32', 's%d' % sBLK, 's3', 1)
    a.salu('s_lshr_b32', 's5', 's3', 1)
    a.salu('s_lshl_b32', 's5', 's5', 2)
    a.salu('s_and_b32', 's6', 's4', 3)
    a.salu('s_add_u32', 's%d' % sHP, 's5', 's6')
    a.salu('s_lshr_b32', 's%d' % sB, 's4', 2)
    a.salu('s_mul_i32', 's5', 's%d' % sBLK, 40)
    a.salu('s_add_u32', 's6', 's0', 's5')
    a.salu('s_addc_u32', 's7', 's1', 0)
    a.other('s_load_dwordx8 s[%d:%d], s[6:7], 0' % (sPTR, sPTR + 7))
    a.other('s_load_dwordx2 s[4:5], s[0:1], 96')
    a.valu('v_and_b32', v(LANE), 63, 'v0')
    a.valu('v_lshrrev_b32', v(TMP), 6, 'v0')
    a.rfl(sW, TMP)
    a.salu('s_mov_b32', 's%d' % sC, '0x%08x' % f2u(SCALE))
    a.salu('s_mov_b32', 's%d' % sTC, '0x%08x' % f2u(TRAW))
    a.scmp('s_cmp_ge_u32', 's%d' % sW, 6)
    a.salu('s_cselect_b32', 's%d' % sHS, 1, 0)
    a.salu('s_mul_i32', 's3', 's%d' % sHS, 6)
    a.salu('s_sub_u32', 's%d' % sQG, 's%d' % sW, 's3')
    a.salu('s_and_b32', 's%d' % sSUB, 's%d' % sW, 3)
    a.wait(lgkm=0)
    px, pk, pv_, pw = sPTR, sPTR + 2, sPTR + 4, sPTR + 6
    a.salu('s_mul_i32', 's3', 's%d' % sB, 196608)
    a.salu('s_add_u32', 's%d' % SRD_X, 's%d' % px, 's3')
    a.salu('s_addc_u32', 's%d' % (SRD_X + 1), 's%d' % (px + 1), 0)
    a.salu('s_mov_b32', 's%d' % (SRD_X + 2), 196608)
    a.salu('s_mov_b32', 's%d' % (SRD_X + 3), '0x00020000')
    a.salu('s_lshl_b32', 's3', 's%d' % sHP, 9)
    a.salu('s_add_u32', 's%d' % SRD_WQ, 's%d' % pw, 's3')
    a.salu('s_addc_u32', 's%d' % (SRD_WQ + 1), 's%d' % (pw + 1), 0)
    a.salu('s_sub_u32', 's%d' % (SRD_WQ + 2), 4194304, 's3')
    a.salu('s_mov_b32', 's%d' % (SRD_WQ + 3), '0x00020000')
    a.salu('s_lshl_b32', 's3', 's%d' % sB, 4)
    a.salu('s_add_u32', 's3', 's3', 's%d' % sHP)
    a.salu('s_lshr_b32', 's6', 's3', 13)
    a.salu('s_lshl_b32', 's3', 's3', 19)
    for srd, p in ((SRD_K, pk), (SRD_V, pv_)):
        a.salu('s_add_u32', 's%d' % srd, 's%d' % p, 's3')
        a.salu('s_addc_u32', 's%d' % (srd + 1), 's%d' % (p + 1), 's6')
        a.salu('s_mov_b32', 's%d' % (srd + 2), 524288)
        a.salu('s_mov_b32', 's%d' % (srd + 3), '0x00020000')
    a.salu('s_lshl_b32', 's3', 's%d' % sBLK, 3)
    a.salu('s_add_u32', 's3', 's3', 's%d' % sB)
    a.salu('s_mul_i32', 's3', 's3', 6)
    a.salu('s_add_u32', 's3', 's3', 's%d' % sQG)
    a.salu('s_lshl_b32', 's3', 's3', 5)
    a.salu('s_lshl_b32', 's6', 's%d' % sHP, 1)
    a.salu('s_add_u32', 's3', 's3', 's6')
    a.salu('s_add_u32', 's3', 's3', 's%d' % sHS)
    a.salu('s_lshl_b32', 's3', 's3', 13)
    a.salu('s_add_u32', 's%d' % SRD_O, 's4', 's3')
    a.salu('s_addc_u32', 's%d' % (SRD_O + 1), 's5', 0)
    a.salu('s_mov_b32', 's%d' % (SRD_O + 2), 8192)
    a.salu('s_mov_b32', 's%d' % (SRD_O + 3), '0x00020000')

    R4 = 0; C16 = 1; A1 = 2; A2 = 3; A4 = 5; A5 = 6
    a.valu('v_lshrrev_b32', v(R4), 4, v(LANE))
    a.valu('v_and_b32', v(C16), 15, v(LANE))
    a.valu('v_lshlrev_b32', v(A1), 2, v(R4))
    a.valu('v_xor_b32', v(A1), v(A1), v(C16))
    a.valu('v_lshlrev_b32', v(A1), 4, v(A1))
    a.valu('v_lshl_add_u32', v(DV), v(R4), 8, v(A1))
    a.salu('s_lshl_b32', 's6', 's%d' % sSUB, 2)
    a.valu('v_add_u32', v(A2), 's6', v(R4))
    a.valu('v_xor_b32', v(A2), v(A2), v(C16))
    a.valu('v_lshlrev_b32', v(A2), 4, v(A2))
    a.valu('v_lshl_add_u32', v(DK), v(R4), 8, v(A2))
    a.valu('v_lshl_add_u32', v(DQ), v(R4), 13, v(A1))
    a.valu('v_and_b32', v(A4), 3, v(LANE))
    a.valu('v_xor_b32', v(A4), v(A4), v(R4))
    a.valu('v_lshlrev_b32', v(A4), 4, v(A4))
    a.valu('v_lshrrev_b32', v(A5), 2, v(LANE))
    a.valu('v_lshl_add_u32', v(DX), v(A5), 10, v(A4))
    a.salu('s_lshr_b32', 's6', 's%d' % sW, 2)
    a.salu('s_and_b32', 's6', 's6', 1)
    a.salu('s_lshl_b32', 's7', 's6', 18)
    a.salu('s_lshl_b32', 's%d' % sP5, 's%d' % sSUB, 10)
    a.salu('s_add_u32', 's%d' % sKVS, 's7', 's%d' % sP5)
    a.salu('s_lshl_b32', 's7', 's6', 16)
    a.salu('s_add_u32', 's%d' % sKVM, 's7', 's%d' % sP5)
    a.salu('s_lshl_b32', 's3', 's%d' % sSUB, 15)
    a.salu('s_lshl_b32', 's4', 's6', 8)
    a.salu('s_add_u32', 's%d' % sWQS, 's3', 's4')
    a.salu('s_mov_b32', 's%d' % sWQB, 's%d' % sKVM)
    a.salu('s_lshl_b32', 's%d' % sXS, 's%d' % sW, 14)
    a.salu('s_lshl_b32', 's4', 's%d' % sW, 10)
    for bi in range(4):
        if bi >= 2:
            a.salu('s_add_u32', 's%d' % (sXB + bi), 's4', EXTRA + (bi - 2) * 12288)
        else:
            a.salu('s_add_u32', 's5', 's4', bi * 65536 + 16384)
            a.salu('s_add_u32', 's6', 's4', EXTRA + 24576 + bi * 4096 - 8192)
            a.scmp('s_cmp_ge_u32', 's%d' % sW, 8)
            a.salu('s_cselect_b32', 's%d' % (sXB + bi), 's6', 's5')
    a.salu('s_and_b32', 's3', 's%d' % sHP, 3)
    a.salu('s_lshl_b32', 's3', 's3', 2)
    a.salu('s_lshl_b32', 's4', 's%d' % sB, 1)
    a.salu('s_add_u32', 's3', 's3', 's4')
    a.salu('s_and_b32', 's3', 's3', 15)
    a.salu('s_lshl_b32', 's%d' % sCHW, 's3', 18)
    a.salu('s_lshl_b32', 's%d' % sCHX, 's3', 6)

    LQ = 8; HF = 9; AA = 10; RR = 11; I1 = 12; X1 = 13; X2 = 14
    def lane_fields():
        a.valu('v_and_b32', v(LQ), 31, v(LANE))
        a.valu('v_lshrrev_b32', v(HF), 5, v(LANE))
        a.valu('v_bfe_u32', v(AA), v(LANE), 4, 1)
        a.valu('v_bfe_u32', v(RR), v(LANE), 2, 2)
        a.valu('v_and_b32', v(I1), 3, v(LANE))
    lane_fields()
    a.salu('s_lshl_b32', 's3', 's%d' % sHS, 16)
    a.valu('v_lshl_add_u32', v(X1), v(HF), 3, v(RR))
    a.valu('v_lshlrev_b32', v(X1), 8, v(X1))
    a.valu('v_lshl_add_u32', v(X1), v(RR), 6, v(X1))
    a.valu('v_lshl_add_u32', v(X1), v(AA), 5, v(X1))
    a.valu('v_and_b32', v(X2), 1, v(I1))
    a.valu('v_lshl_add_u32', v(X1), v(X2), 4, v(X1))
    a.valu('v_lshrrev_b32', v(X2), 1, v(I1))
    a.valu('v_lshl_add_u32', v(X1), v(X2), 3, v(X1))
    a.valu('v_add_u32', v(X1), 's3', v(X1))
    for T in range(4):
        a.valu('v_xor_b32', v(WA + T), T * 64, v(X1))
    a.valu('v_bfe_u32', v(X1), v(LQ), 2, 2)
    a.valu('v_xor_b32', v(X1), v(X1), v(HF))
    a.valu('v_lshlrev_b32', v(X1), 4, v(X1))
    a.valu('v_lshl_add_u32', v(X1), v(LQ), 6, v(X1))
    a.salu('s_lshl_b32', 's4', 's%d' % sQG, 11)
    for bi in range(4):
        if bi >= 2:
            a.salu('s_add_u32', 's5', 's4', EXTRA + (bi - 2) * 12288)
        else:
            a.salu('s_add_u32', 's5', 's4', bi * 65536 + 16384)
            a.salu('s_add_u32', 's6', 's4', EXTRA + 24576 + bi * 4096 - 4 * 2048)
            a.scmp('s_cmp_ge_u32', 's%d' % sQG, 4)
            a.salu('s_cselect_b32', 's5', 's6', 's5')
        a.valu('v_add_u32', v(XA + 2 * bi), 's5', v(X1))
        a.valu('v_xor_b32', v(XA + 2 * bi + 1), 32, v(XA + 2 * bi))
    a.scmp('s_cmp_ge_u32', 's%d' % sW, 8)
    a.branch('s_cbranch_scc1', 'K1_ROLE2')
    a.scmp('s_cmp_ge_u32', 's%d' % sW, 4)
    a.branch('s_cbranch_scc1', 'K1_ROLE1')

    slow_paths = []
    nlab = [0]
    for role in range(3):
        if role: a.label('K1_ROLE%d' % role)
        a.vmq = []; a.ldsq = []
        R = 'r%d' % role
        loader = role < 2

        def q_items(ch):
            bi = ch & 3
            it = []
            def fx():
                a.salu('s_add_u32', 's%d' % sT, 's%d' % sXS, 's%d' % sCHX)
                a.salu('s_mov_b32', 'm0', 's%d' % (sXB + bi))
                a.dma(DX, SRD_X, 's%d' % sT, tag=('q', ch))
                a.salu('s_add_u32', 's%d' % sCHX, 's%d' % sCHX, 64)
                a.salu('s_and_b32', 's%d' % sCHX, 's%d' % sCHX, 1023)
            it.append(fx)
            if loader:
                for e in range(2):
                    def fw(e=e):
                        a.salu('s_add_u32', 's%d' % sT, 's%d' % sWQS, 's%d' % sCHW)
                        if e: a.salu('s_add_u32', 's%d' % sT, 's%d' % sT, 16 * 8192)
                        a.salu('s_add_u32', 'm0', 's%d' % sWQB, WQBUF[bi] + e * 4096)
                        a.dma(DQ, SRD_WQ, 's%d' % sT, tag=('q', ch))
                        if e:
                            a.salu('s_add_u32', 's%d' % sCHW, 's%d' % sCHW, 262144)
                            a.salu('s_and_b32', 's%d' % sCHW, 's%d' % sCHW, 4194303)
                    it.append(fw)
            return it
        pro = []
        if role == 2:
            for (isv, tile) in ((0, 0), (1, 0), (0, 1)):
                for h in range(2):
                    for e in range(2):
                        def fp(isv=isv, tile=tile, h=h, e=e):
                            a.salu('s_add_u32', 'm0', 's%d' % sP5, h * 65536 + (32768 if isv else 0) + tile * 8192 + e * 4096)
                            a.salu('s_add_u32', 's%d' % sT, 's%d' % sP5, h * 262144 + tile * 8192 + e * 4096)
                            a.dma(DV if isv else DK, SRD_V if isv else SRD_K, 's%d' % sT, nt, tag='kvpro')
                        pro.append(fp)
        def q_reads(ch):
            bi = ch & 3; st_ = ch & 1
            it = []
            for s in range(2):
                it.append(lambda s=s: a.ds_read128(BFR[st_] + 4 * s, XA + 2 * bi + s, tag=('b', s)))
                for T in range(4):
                    for e in range(2):
                        it.append(lambda s=s, T=T, e=e: a.ds_read_tr(AF[st_] + (s * 4 + T) * 4 + 2 * e, WA + T, WQBUF[bi] + (16 * s + 4 * e) * 256, tag=('a', s, T)))
            return it
        for ch in range(4):
            for f in q_items(ch): f()
        if role == 2:
            for f in pro[:4]: f()
            pro = pro[4:]
        a.vm_need([('q', 0), ('q', 1)], lgkm0=True)
        a.barrier()
        for f in q_reads(0): f()
        a.wait(lgkm=0)
        for ch in range(16):
            a.barrier()
            st_ = ch & 1
            rd = q_reads(ch + 1) if ch + 1 < 16 else []
            dm = q_items(ch + 4) if ch + 4 < 16 else []
            if role == 2 and pro:
                dm = dm + [pro.pop(0)]
            n = 0
            for s in range(2):
                for T in range(4):
                    a.mfma32(O + 16 * T, AF[st_] + (s * 4 + T) * 4, BFR[st_] + 4 * s, C=('same' if not (ch == 0 and s == 0) else 0))
                    for _ in range(3):
                        if rd: rd.pop(0)()
                    if dm and (n % 2 == role % 2): dm.pop(0)()
                    n += 1
            while rd: rd.pop(0)()
            while dm: dm.pop(0)()
            if ch + 2 < 16:
                a.vm_need([('q', ch + 2)], lgkm0=True)
            else:
                a.wait(lgkm=0)
        if role == 0: stamp()
        while pro: pro.pop(0)()
        for T in range(4):
            for u in range(2):
                for i in range(4):
                    a.valu('v_cvt_pk_bf16_f32', v(Q + (2 * T + u) * 4 + i), v(O + 16 * T + 8 * u + 2 * i), v(O + 16 * T + 8 * u + 2 * i + 1))
        lane_fields()
        a.salu('s_lshl_b32', 's3', 's%d' % sHS, 16)
        a.valu('v_and_b32', v(X1), 15, v(LQ))
        a.valu('v_xor_b32', v(X1), v(X1), v(HF))
        a.valu('v_lshlrev_b32', v(X1), 4, v(X1))
        a.valu('v_lshl_add_u32', v(X1), v(LQ), 8, v(X1))
        a.valu('v_add_u32', v(X1), 's3', v(X1))
        for t in range(8):
            a.valu('v_xor_b32', v(KA + t), t * 32, v(X1))
        a.valu('v_lshl_add_u32', v(X1), v(HF), 2, v(RR))
        a.valu('v_lshlrev_b32', v(X1), 8, v(X1))
        a.valu('v_lshl_add_u32', v(X1), v(RR), 6, v(X1))
        a.valu('v_lshl_add_u32', v(X1), v(AA), 5, v(X1))
        a.valu('v_lshl_add_u32', v(X1), v(I1), 3, v(X1))
        a.valu('v_add_u32', v(X1), 's3', v(X1))
        for dt in range(4):
            a.valu('v_xor_b32', v(VA + dt), dt * 64, v(X1))
        for r in range(64):
            a.valu('v_mov_b32', v(O + r), 0)
        a.valu('v_mov_b32', v(MRUN), '0x%08x' % f2u(-1e30))
        a.valu('v_mov_b32', v(THR), '0x%08x' % f2u(-1e30))
        a.valu('v_mov_b32', v(NEGMC), 0)
        a.valu('v_mov_b32', v(L0), 0)
        a.valu('v_mov_b32', v(L1), 0)
        a.wait(vm=0, lgkm=0)
        a.vmq = []
        a.barrier()
        def dma_items(kslot, vslot):
            items = []
            if kslot is not None:
                for e in range(2):
                    def f(e=e):
                        a.salu('s_add_u32', 'm0', 's%d' % sKVM, kslot * 8192 + e * 4096)
                        a.salu('s_add_u32', 's%d' % sT, 's%d' % sKSO, e * 4096)
                        a.dma(DK, SRD_K, 's%d' % sT, nt)
                        if e == 1: a.salu('s_add_u32', 's%d' % sKSO, 's%d' % sKSO, 8192)
                    items.append(f)
            if vslot is not None:
                for e in range(2):
                    def f(e=e):
                        a.salu('s_add_u32', 'm0', 's%d' % sKVM, 32768 + vslot * 8192 + e * 4096)
                        a.salu('s_add_u32', 's%d' % sT, 's%d' % sVSO, e * 4096)
                        a.dma(DV, SRD_V, 's%d' % sT, nt)
                        if e == 1: a.salu('s_add_u32', 's%d' % sVSO, 's%d' % sVSO, 8192)
                    items.append(f)
            return items
        pend = []; sidx = [0]
        def maybe_dma(pos):
            if not pend: return
            if spread:
                lab = 'K1_SP%d' % nlab[0]; nlab[0] += 1
                a.scmp('s_cmp_lg_u32', 's%d' % sSUB, pos & 3)
                a.branch('s_cbranch_scc1', lab)
                a.cond_begin()
                pend[sidx[0] + (pos >> 2)]()
                a.cond_end()
                a.label(lab, pad=False)
                if pos == 7: sidx[0] += 2
            else:
                if pos in ((1, 5) if role == 0 else (3, 7)):
                    pend[sidx[0]](); sidx[0] += 1
        def rk(slot, t):
            a.ds_read128(POOL + 4 * t, KA + t, slot * 8192, tag=('k', t))
        def qk(vslot):
            for t in range(8):
                maybe_dma(t)
                a.lds_need([('k', t)])
                a.mfma32(S, POOL + 4 * t, Q + 4 * t, C=(0 if t == 0 else 'same'))
                u = t >> 2; dt = t & 3
                for e in range(2):
                    a.ds_read_tr(POOL + 4 * t + 2 * e, VA + dt, 32768 + vslot * 8192 + (16 * u + 8 * e) * 256, tag=('v', t))
        def pv(kslot):
            for t in range(8):
                maybe_dma(t)
                u = t >> 2; dt = t & 3
                a.lds_need([('v', t)])
                a.mfma32(O + 16 * dt, POOL + 4 * t, S + 4 * u)
                if kslot is not None:
                    rk(kslot, t)
        def sm(tag):
            a.valu('v_max3_f32', v(T0), v(S), v(S + 1), v(S + 2))
            a.valu('v_max3_f32', v(T1), v(S + 3), v(S + 4), v(S + 5))
            a.valu('v_max3_f32', v(T0), v(T0), v(S + 6), v(S + 7))
            a.valu('v_max3_f32', v(T1), v(T1), v(S + 8), v(S + 9))
            a.valu('v_max3_f32', v(T0), v(T0), v(S + 10), v(S + 11))
            a.valu('v_max3_f32', v(T1), v(T1), v(S + 12), v(S + 13))
            a.valu('v_max3_f32', v(T0), v(T0), v(S + 14), v(S + 15))
            a.valu('v_max_f32', v(T0), v(T0), v(T1))
            a.valu('v_cmp_gt_f32', 'vcc', v(T0), v(THR))
            a.branch('s_cbranch_vccnz', 'K1_SLOW' + tag)
            a.label('K1_RET' + tag, pad=False)
            slow_paths.append(tag)
            for i in range(16):
                a.valu('v_fma_f32', v(S + i), v(S + i), 's%d' % sC, v(NEGMC))
            for i in range(16):
                a.valu('v_exp_f32', v(S + i), v(S + i), trans=True)
            for i in range(0, 16, 2):
                a.valu('v_add_f32', v(L0), v(L0), v(S + i))
                a.valu('v_add_f32', v(L1), v(L1), v(S + i + 1))
                a.valu('v_cvt_pk_bf16_f32', v(S + i // 2), v(S + i), v(S + i + 1))
        def stage(k, tag, first=False, lastst=False):
            j = k & 3
            iss = (k + depth) <= 31
            allowed = 4 * max(0, min(31, k + depth) - (k + 1))
            a.barrier()
            sidx[0] = 0
            pend[:] = dma_items((j + depth) & 3, (j + depth) & 3) if (loader and iss) else []
            if role == 0:
                for t in range(8): rk(j, t)
                qk(j); sm(tag); pv(None)
            elif role == 1:
                if first:
                    for t in range(8): rk(j, t)
                else:
                    pv(j)
                qk(j); sm(tag)
            else:
                if first:
                    for t in range(8): rk(j, t)
                else:
                    sm(tag); pv(j)
                qk(j)
            while sidx[0] < len(pend):
                pend[sidx[0]](); sidx[0] += 1
            pend[:] = []
            if not lastst:
                if loader: a.wait(vm=allowed, lgkm=0)
                else: a.wait(lgkm=0)
        if loader:
            a.salu('s_add_u32', 's%d' % sVSO, 's%d' % sKVS, 1 * 8192)
            a.salu('s_add_u32', 's%d' % sKSO, 's%d' % sKVS, 2 * 8192)
            for f in dma_items(None, 1): f()
            for g in range(2, depth):
                for f in dma_items(g, g): f()
        if role == 0: stamp()
        stage(0, R + 'p0', first=True)
        for j in range(1, 4):
            stage(j, R + 'p%d' % j)
        a.salu('s_mov_b32', 's%d' % sIT, 0)
        a.label('K1_LOOP' + R, pad=False)
        for j in range(4):
            stage(4 + j, R + 'a%d' % j)
        a.salu('s_add_u32', 's%d' % sIT, 's%d' % sIT, 1)
        a.scmp('s_cmp_lt_u32', 's%d' % sIT, 6)
        a.branch('s_cbranch_scc1', 'K1_LOOP' + R)
        if role == 0: stamp()
        stage(28, R + 'b0'); stage(29, R + 'b1'); stage(30, R + 'b2'); stage(31, R + 'b3', lastst=True)
        if role == 1:
            pv(None)
        elif role == 2:
            sm(R + 'z'); pv(None)
        a.wait(lgkm=0)
        if role < 2:
            a.nop_all()
            a.branch('s_branch', 'K1_EPI')
    a.label('K1_EPI')
    stamp()
    a.valu('v_add_f32', v(L0), v(L0), v(L1))
    a.valu('v_mov_b32', v(T0), v(L0))
    a.ins('v_permlane32_swap_b32 v%d, v%d' % (L0, T0), 'perm', [L0, T0], [L0, T0])
    a.valu('v_add_f32', v(L0), v(L0), v(T0))
    a.valu('v_rcp_f32', v(L0), v(L0), trans=True)
    a.valu('v_lshlrev_b32', v(T1), 4, v(LANE))
    a.valu('v_add_u32', v(TMP), 4096, v(T1))
    for dt in range(4):
        for r in range(16):
            a.valu('v_mul_f32', v(O + 16 * dt + r), v(O + 16 * dt + r), v(L0))
        for u in range(2):
            f = dt * 2 + u
            d = POOL + f * 4
            for i in range(4):
                a.valu('v_cvt_pk_bf16_f32', v(d + i), v(O + 16 * dt + 8 * u + 2 * i), v(O + 16 * dt + 8 * u + 2 * i + 1))
            a.bstore128(d, T1 if f < 4 else TMP, SRD_O, '0', (f & 3) * 1024)
    if stamps:
        a.wait(vm=0)
        stamp()
        a.wait(lgkm=0)
        a.scmp('s_cmp_lg_u32', 's%d' % sW, 0)
        a.branch('s_cbranch_scc1', 'K1_END')
        a.other('s_load_dwordx2 s[4:5], s[0:1], 96')
        a.wait(lgkm=0)
        a.salu('s_lshl_b32', 's3', 's2', 6)
        a.salu('s_add_u32', 's3', 's3', 64 << 20)
        a.salu('s_add_u32', 's4', 's4', 's3')
        a.salu('s_addc_u32', 's5', 's5', 0)
        a.salu('s_mov_b32', 's6', 64)
        a.salu('s_mov_b32', 's7', '0x00020000')
        a.valu('v_mov_b32', v(T0), 0)
        for i in range(nst[0]):
            a.valu('v_mov_b32', v(POOL), 's%d' % (70 + 2 * i))
            a.bstore32(POOL, T0, 4, '0', 4 * i)
            a.valu('v_mov_b32', v(POOL + 1), 's%d' % (84 + 2 * i))
            a.bstore32(POOL + 1, T0, 4, '0', 32 + 4 * i)
    a.label('K1_END')
    a.other('s_endpgm')
    for tag in slow_paths:
        a.label('K1_SLOW' + tag)
        a.valu('v_mov_b32', v(T1), v(T0))
        a.ins('v_permlane32_swap_b32 v%d, v%d' % (T0, T1), 'perm', [T0, T1], [T0, T1])
        a.valu('v_max3_f32', v(T0), v(T0), v(T1), v(MRUN))
        a.valu('v_sub_f32', v(T1), v(MRUN), v(T0))
        a.valu('v_mul_f32', v(T1), 's%d' % sC, v(T1))
        a.valu('v_exp_f32', v(T1), v(T1), trans=True)
        a.valu('v_mov_b32', v(MRUN), v(T0))
        a.valu('v_add_f32', v(THR), 's%d' % sTC, v(T0))
        a.valu('v_mul_f32', v(NEGMC), 's%d' % sC, v(T0))
        a.valu('v_sub_f32', v(NEGMC), 0, v(NEGMC))
        a.valu('v_mul_f32', v(L0), v(L0), v(T1))
        a.valu('v_mul_f32', v(L1), v(L1), v(T1))
        for r in range(64):
            a.valu('v_mul_f32', v(O + r), v(O + r), v(T1))
        a.nop_all()
        a.branch('s_branch', 'K1_RET' + tag)

def kd(name, nv, ns=100):
    return '''.section .rodata,"a"
.p2align 6
.amdhsa_kernel %s
  .amdhsa_next_free_vgpr %d
  .amdhsa_next_free_sgpr %d
  .amdhsa_accum_offset %d
  .amdhsa_group_segment_fixed_size 0
  .amdhsa_kernarg_size 104
  .amdhsa_user_sgpr_count 2
  .amdhsa_user_sgpr_kernarg_segment_ptr 1
  .amdhsa_system_sgpr_workgroup_id_x 1
.end_amdhsa_kernel
''' % (name, nv, ns, (nv + 3) // 4 * 4)
```

```python
from asmlib import Asm
import struct

def f2u(x): return struct.unpack('<I', struct.pack('<f', x))[0]

O = 0
Q = 64
S = 96
POOL = 112
KA = 144
VA = 152
MRUN = 156; THR = 157; NEGMC = 158; L0 = 159; L1 = 160; T0 = 161; T1 = 162
DK = 163; DV = 164; DQ = 165; LANE = 166; TMP = 167
NV = 168
WA = S
XA = S + 4
DX = S + 12
AF = [POOL, Q]
BFR = [KA, KA + 8]

SRD_X = 8; SRD_WQ = 12; SRD_K = 16; SRD_V = 20; SRD_O = 24
sW = 28; sHS = 29; sQG = 30; sC = 31
sWQB = 32
sWQS = 33
sXS = 34
sXB = 36
sCHW = 40; sCHX = 41
sKVS = 45; sKVM = 46; sKSO = 47; sVSO = 48; sT = 49; sIT = 50
sPTR = 56
SRD_WO = 52
sBLK = 64; sB = 65; sHP = 66; sTC = 67; sSUB = 68; sP5 = 69

SCALE = 1.4426950408889634 / (128 ** 0.5)
TRAW = 8.0 / SCALE
EXTRA = 131072
WQBUF = [32768 + 8192, 32768 + 16384, 3 * 8192, 32768 + 24576]

def gen_k1(a: Asm, name, nt=True, stamps=False, depth=2, spread=True, wo_stage=31, **dbg):
    v = a.vr
    nst = [0]
    def stamp():
        if not stamps: return
        a.other('s_memrealtime s[%d:%d]' % (70 + 2 * nst[0], 71 + 2 * nst[0]))
        a.other('s_memtime s[%d:%d]' % (84 + 2 * nst[0], 85 + 2 * nst[0]))
        nst[0] += 1
    a.raw('.p2align 8'); a.raw('.type %s,@function' % name); a.raw(name + ':')
    a.scmp('s_cmp_ge_u32', 's2', 256)
    a.branch('s_cbranch_scc1', 'K1_END')
    stamp()
    a.salu('s_and_b32', 's3', 's2', 7)
    a.salu('s_lshr_b32', 's4', 's2', 3)
    a.salu('s_and_b32', 's%d' % sBLK, 's3', 1)
    a.salu('s_lshr_b32', 's5', 's3', 1)
    a.salu('s_lshl_b32', 's5', 's5', 2)
    a.salu('s_and_b32', 's6', 's4', 3)
    a.salu('s_add_u32', 's%d' % sHP, 's5', 's6')
    a.salu('s_lshr_b32', 's%d' % sB, 's4', 2)
    a.salu('s_mul_i32', 's5', 's%d' % sBLK, 40)
    a.salu('s_add_u32', 's6', 's0', 's5')
    a.salu('s_addc_u32', 's7', 's1', 0)
    a.other('s_load_dwordx8 s[%d:%d], s[6:7], 0' % (sPTR, sPTR + 7))
    a.other('s_load_dwordx2 s[4:5], s[0:1], 96')
    a.other('s_load_dwordx2 s[%d:%d], s[6:7], 32' % (SRD_WO, SRD_WO + 1))
    a.valu('v_and_b32', v(LANE), 63, 'v0')
    a.valu('v_lshrrev_b32', v(TMP), 6, 'v0')
    a.rfl(sW, TMP)
    a.salu('s_mov_b32', 's%d' % sC, '0x%08x' % f2u(SCALE))
    a.salu('s_mov_b32', 's%d' % sTC, '0x%08x' % f2u(TRAW))
    a.scmp('s_cmp_ge_u32', 's%d' % sW, 6)
    a.salu('s_cselect_b32', 's%d' % sHS, 1, 0)
    a.salu('s_mul_i32', 's3', 's%d' % sHS, 6)
    a.salu('s_sub_u32', 's%d' % sQG, 's%d' % sW, 's3')
    a.salu('s_and_b32', 's%d' % sSUB, 's%d' % sW, 3)
    a.wait(lgkm=0)
    px, pk, pv_, pw = sPTR, sPTR + 2, sPTR + 4, sPTR + 6
    a.salu('s_mul_i32', 's3', 's%d' % sB, 196608)
    a.salu('s_add_u32', 's%d' % SRD_X, 's%d' % px, 's3')
    a.salu('s_addc_u32', 's%d' % (SRD_X + 1), 's%d' % (px + 1), 0)
    a.salu('s_mov_b32', 's%d' % (SRD_X + 2), 196608)
    a.salu('s_mov_b32', 's%d' % (SRD_X + 3), '0x00020000')
    a.salu('s_lshl_b32', 's3', 's%d' % sHP, 9)
    a.salu('s_add_u32', 's%d' % SRD_WQ, 's%d' % pw, 's3')
    a.salu('s_addc_u32', 's%d' % (SRD_WQ + 1), 's%d' % (pw + 1), 0)
    a.salu('s_sub_u32', 's%d' % (SRD_WQ + 2), 4194304, 's3')
    a.salu('s_mov_b32', 's%d' % (SRD_WQ + 3), '0x00020000')
    a.salu('s_lshl_b32', 's3', 's%d' % sB, 4)
    a.salu('s_add_u32', 's3', 's3', 's%d' % sHP)
    a.salu('s_lshr_b32', 's6', 's3', 13)
    a.salu('s_lshl_b32', 's3', 's3', 19)
    for srd, p in ((SRD_K, pk), (SRD_V, pv_)):
        a.salu('s_add_u32', 's%d' % srd, 's%d' % p, 's3')
        a.salu('s_addc_u32', 's%d' % (srd + 1), 's%d' % (p + 1), 's6')
        a.salu('s_mov_b32', 's%d' % (srd + 2), 524288)
        a.salu('s_mov_b32', 's%d' % (srd + 3), '0x00020000')
    a.salu('s_lshl_b32', 's3', 's%d' % sBLK, 3)
    a.salu('s_add_u32', 's3', 's3', 's%d' % sB)
    a.salu('s_mul_i32', 's3', 's3', 6)
    a.salu('s_add_u32', 's3', 's3', 's%d' % sQG)
    a.salu('s_lshl_b32', 's3', 's3', 5)
    a.salu('s_lshl_b32', 's6', 's%d' % sHP, 1)
    a.salu('s_add_u32', 's3', 's3', 's6')
    a.salu('s_add_u32', 's3', 's3', 's%d' % sHS)
    a.salu('s_lshl_b32', 's3', 's3', 13)
    a.salu('s_add_u32', 's%d' % SRD_O, 's4', 's3')
    a.salu('s_addc_u32', 's%d' % (SRD_O + 1), 's5', 0)
    a.salu('s_mov_b32', 's%d' % (SRD_O + 2), 8192)
    a.salu('s_mov_b32', 's%d' % (SRD_O + 3), '0x00020000')

    a.salu('s_lshr_b32', 's3', 's2', 1)
    a.salu('s_and_b32', 's3', 's3', 3)
    a.salu('s_lshl_b32', 's3', 's3', 5)
    a.salu('s_lshr_b32', 's6', 's2', 3)
    a.salu('s_add_u32', 's3', 's3', 's6')
    a.salu('s_lshl_b32', 's3', 's3', 15)
    a.salu('s_add_u32', 's%d' % SRD_WO, 's%d' % SRD_WO, 's3')
    a.salu('s_addc_u32', 's%d' % (SRD_WO + 1), 's%d' % (SRD_WO + 1), 0)
    a.salu('s_mov_b32', 's%d' % (SRD_WO + 2), 32768)
    a.salu('s_mov_b32', 's%d' % (SRD_WO + 3), '0x00020000')
    R4 = 0; C16 = 1; A1 = 2; A2 = 3; A4 = 5; A5 = 6
    a.valu('v_lshrrev_b32', v(R4), 4, v(LANE))
    a.valu('v_and_b32', v(C16), 15, v(LANE))
    a.valu('v_lshlrev_b32', v(A1), 2, v(R4))
    a.valu('v_xor_b32', v(A1), v(A1), v(C16))
    a.valu('v_lshlrev_b32', v(A1), 4, v(A1))
    a.valu('v_lshl_add_u32', v(DV), v(R4), 8, v(A1))
    a.salu('s_lshl_b32', 's6', 's%d' % sSUB, 2)
    a.valu('v_add_u32', v(A2), 's6', v(R4))
    a.valu('v_xor_b32', v(A2), v(A2), v(C16))
    a.valu('v_lshlrev_b32', v(A2), 4, v(A2))
    a.valu('v_lshl_add_u32', v(DK), v(R4), 8, v(A2))
    a.valu('v_lshl_add_u32', v(DQ), v(R4), 13, v(A1))
    a.valu('v_and_b32', v(A4), 3, v(LANE))
    a.valu('v_xor_b32', v(A4), v(A4), v(R4))
    a.valu('v_lshlrev_b32', v(A4), 4, v(A4))
    a.valu('v_lshrrev_b32', v(A5), 2, v(LANE))
    a.valu('v_lshl_add_u32', v(DX), v(A5), 10, v(A4))
    a.salu('s_lshr_b32', 's6', 's%d' % sW, 2)
    a.salu('s_and_b32', 's6', 's6', 1)
    a.salu('s_lshl_b32', 's7', 's6', 18)
    a.salu('s_lshl_b32', 's%d' % sP5, 's%d' % sSUB, 10)
    a.salu('s_add_u32', 's%d' % sKVS, 's7', 's%d' % sP5)
    a.salu('s_lshl_b32', 's7', 's6', 16)
    a.salu('s_add_u32', 's%d' % sKVM, 's7', 's%d' % sP5)
    a.salu('s_lshl_b32', 's3', 's%d' % sSUB, 15)
    a.salu('s_lshl_b32', 's4', 's6', 8)
    a.salu('s_add_u32', 's%d' % sWQS, 's3', 's4')
    a.salu('s_mov_b32', 's%d' % sWQB, 's%d' % sKVM)
    a.salu('s_lshl_b32', 's%d' % sXS, 's%d' % sW, 14)
    a.salu('s_lshl_b32', 's4', 's%d' % sW, 10)
    for bi in range(4):
        if bi >= 2:
            a.salu('s_add_u32', 's%d' % (sXB + bi), 's4', EXTRA + (bi - 2) * 12288)
        else:
            a.salu('s_add_u32', 's5', 's4', bi * 65536 + 16384)
            a.salu('s_add_u32', 's6', 's4', EXTRA + 24576 + bi * 4096 - 8192)
            a.scmp('s_cmp_ge_u32', 's%d' % sW, 8)
            a.salu('s_cselect_b32', 's%d' % (sXB + bi), 's6', 's5')
    a.salu('s_and_b32', 's3', 's%d' % sHP, 3)
    a.salu('s_lshl_b32', 's3', 's3', 2)
    a.salu('s_lshl_b32', 's4', 's%d' % sB, 1)
    a.salu('s_add_u32', 's3', 's3', 's4')
    a.salu('s_and_b32', 's3', 's3', 15)
    a.salu('s_lshl_b32', 's%d' % sCHW, 's3', 18)
    a.salu('s_lshl_b32', 's%d' % sCHX, 's3', 6)

    LQ = 8; HF = 9; AA = 10; RR = 11; I1 = 12; X1 = 13; X2 = 14
    def lane_fields():
        a.valu('v_and_b32', v(LQ), 31, v(LANE))
        a.valu('v_lshrrev_b32', v(HF), 5, v(LANE))
        a.valu('v_bfe_u32', v(AA), v(LANE), 4, 1)
        a.valu('v_bfe_u32', v(RR), v(LANE), 2, 2)
        a.valu('v_and_b32', v(I1), 3, v(LANE))
    lane_fields()
    a.salu('s_lshl_b32', 's3', 's%d' % sHS, 16)
    a.valu('v_lshl_add_u32', v(X1), v(HF), 3, v(RR))
    a.valu('v_lshlrev_b32', v(X1), 8, v(X1))
    a.valu('v_lshl_add_u32', v(X1), v(RR), 6, v(X1))
    a.valu('v_lshl_add_u32', v(X1), v(AA), 5, v(X1))
    a.valu('v_and_b32', v(X2), 1, v(I1))
    a.valu('v_lshl_add_u32', v(X1), v(X2), 4, v(X1))
    a.valu('v_lshrrev_b32', v(X2), 1, v(I1))
    a.valu('v_lshl_add_u32', v(X1), v(X2), 3, v(X1))
    a.valu('v_add_u32', v(X1), 's3', v(X1))
    for T in range(4):
        a.valu('v_xor_b32', v(WA + T), T * 64, v(X1))
    a.valu('v_bfe_u32', v(X1), v(LQ), 2, 2)
    a.valu('v_xor_b32', v(X1), v(X1), v(HF))
    a.valu('v_lshlrev_b32', v(X1), 4, v(X1))
    a.valu('v_lshl_add_u32', v(X1), v(LQ), 6, v(X1))
    a.salu('s_lshl_b32', 's4', 's%d' % sQG, 11)
    for bi in range(4):
        if bi >= 2:
            a.salu('s_add_u32', 's5', 's4', EXTRA + (bi - 2) * 12288)
        else:
            a.salu('s_add_u32', 's5', 's4', bi * 65536 + 16384)
            a.salu('s_add_u32', 's6', 's4', EXTRA + 24576 + bi * 4096 - 4 * 2048)
            a.scmp('s_cmp_ge_u32', 's%d' % sQG, 4)
            a.salu('s_cselect_b32', 's5', 's6', 's5')
        a.valu('v_add_u32', v(XA + 2 * bi), 's5', v(X1))
        a.valu('v_xor_b32', v(XA + 2 * bi + 1), 32, v(XA + 2 * bi))
    a.scmp('s_cmp_ge_u32', 's%d' % sW, 8)
    a.branch('s_cbranch_scc1', 'K1_ROLE2')
    a.scmp('s_cmp_ge_u32', 's%d' % sW, 4)
    a.branch('s_cbranch_scc1', 'K1_ROLE1')

    slow_paths = []
    nlab = [0]
    for role in range(3):
        if role: a.label('K1_ROLE%d' % role)
        a.vmq = []; a.ldsq = []
        R = 'r%d' % role
        loader = role < 2

        def q_items(ch):
            bi = ch & 3
            it = []
            def fx():
                a.salu('s_add_u32', 's%d' % sT, 's%d' % sXS, 's%d' % sCHX)
                a.salu('s_mov_b32', 'm0', 's%d' % (sXB + bi))
                a.dma(DX, SRD_X, 's%d' % sT, tag=('q', ch))
                a.salu('s_add_u32', 's%d' % sCHX, 's%d' % sCHX, 64)
                a.salu('s_and_b32', 's%d' % sCHX, 's%d' % sCHX, 1023)
            it.append(fx)
            if loader:
                for e in range(2):
                    def fw(e=e):
                        a.salu('s_add_u32', 's%d' % sT, 's%d' % sWQS, 's%d' % sCHW)
                        if e: a.salu('s_add_u32', 's%d' % sT, 's%d' % sT, 16 * 8192)
                        a.salu('s_add_u32', 'm0', 's%d' % sWQB, WQBUF[bi] + e * 4096)
                        a.dma(DQ, SRD_WQ, 's%d' % sT, tag=('q', ch))
                        if e:
                            a.salu('s_add_u32', 's%d' % sCHW, 's%d' % sCHW, 262144)
                            a.salu('s_and_b32', 's%d' % sCHW, 's%d' % sCHW, 4194303)
                    it.append(fw)
            return it
        pro = []
        if role == 2:
            for (isv, tile) in ((0, 0), (1, 0), (0, 1)):
                for h in range(2):
                    for e in range(2):
                        def fp(isv=isv, tile=tile, h=h, e=e):
                            a.salu('s_add_u32', 'm0', 's%d' % sP5, h * 65536 + (32768 if isv else 0) + tile * 8192 + e * 4096)
                            a.salu('s_add_u32', 's%d' % sT, 's%d' % sP5, h * 262144 + tile * 8192 + e * 4096)
                            a.dma(DV if isv else DK, SRD_V if isv else SRD_K, 's%d' % sT, nt, tag='kvpro')
                        pro.append(fp)
        def q_reads(ch):
            bi = ch & 3; st_ = ch & 1
            it = []
            for s in range(2):
                it.append(lambda s=s: a.ds_read128(BFR[st_] + 4 * s, XA + 2 * bi + s, tag=('b', s)))
                for T in range(4):
                    for e in range(2):
                        it.append(lambda s=s, T=T, e=e: a.ds_read_tr(AF[st_] + (s * 4 + T) * 4 + 2 * e, WA + T, WQBUF[bi] + (16 * s + 4 * e) * 256, tag=('a', s, T)))
            return it
        for ch in range(4):
            for f in q_items(ch): f()
        if role == 2:
            for f in pro[:4]: f()
            pro = pro[4:]
        a.vm_need([('q', 0), ('q', 1)], lgkm0=True)
        a.barrier()
        for f in q_reads(0): f()
        a.wait(lgkm=0)
        for ch in range(16):
            a.barrier()
            st_ = ch & 1
            rd = q_reads(ch + 1) if ch + 1 < 16 else []
            dm = q_items(ch + 4) if ch + 4 < 16 else []
            if role == 2 and pro:
                dm = dm + [pro.pop(0)]
            n = 0
            for s in range(2):
                for T in range(4):
                    a.mfma32(O + 16 * T, AF[st_] + (s * 4 + T) * 4, BFR[st_] + 4 * s, C=('same' if not (ch == 0 and s == 0) else 0))
                    for _ in range(3):
                        if rd: rd.pop(0)()
                    if dm and (n % 2 == role % 2): dm.pop(0)()
                    n += 1
            while rd: rd.pop(0)()
            while dm: dm.pop(0)()
            if ch + 2 < 16:
                a.vm_need([('q', ch + 2)], lgkm0=True)
            else:
                a.wait(lgkm=0)
        if role == 0: stamp()
        while pro: pro.pop(0)()
        for T in range(4):
            for u in range(2):
                for i in range(4):
                    a.valu('v_cvt_pk_bf16_f32', v(Q + (2 * T + u) * 4 + i), v(O + 16 * T + 8 * u + 2 * i), v(O + 16 * T + 8 * u + 2 * i + 1))
        lane_fields()
        a.salu('s_lshl_b32', 's3', 's%d' % sHS, 16)
        a.valu('v_and_b32', v(X1), 15, v(LQ))
        a.valu('v_xor_b32', v(X1), v(X1), v(HF))
        a.valu('v_lshlrev_b32', v(X1), 4, v(X1))
        a.valu('v_lshl_add_u32', v(X1), v(LQ), 8, v(X1))
        a.valu('v_add_u32', v(X1), 's3', v(X1))
        for t in range(8):
            a.valu('v_xor_b32', v(KA + t), t * 32, v(X1))
        a.valu('v_lshl_add_u32', v(X1), v(HF), 2, v(RR))
        a.valu('v_lshlrev_b32', v(X1), 8, v(X1))
        a.valu('v_lshl_add_u32', v(X1), v(RR), 6, v(X1))
        a.valu('v_lshl_add_u32', v(X1), v(AA), 5, v(X1))
        a.valu('v_lshl_add_u32', v(X1), v(I1), 3, v(X1))
        a.valu('v_add_u32', v(X1), 's3', v(X1))
        for dt in range(4):
            a.valu('v_xor_b32', v(VA + dt), dt * 64, v(X1))
        for r in range(64):
            a.valu('v_mov_b32', v(O + r), 0)
        a.valu('v_mov_b32', v(MRUN), '0x%08x' % f2u(-1e30))
        a.valu('v_mov_b32', v(THR), '0x%08x' % f2u(-1e30))
        a.valu('v_mov_b32', v(NEGMC), 0)
        a.valu('v_mov_b32', v(L0), 0)
        a.valu('v_mov_b32', v(L1), 0)
        a.wait(vm=0, lgkm=0)
        a.vmq = []
        a.barrier()
        def dma_items(kslot, vslot):
            items = []
            if kslot is not None:
                for e in range(2):
                    def f(e=e):
                        a.salu('s_add_u32', 'm0', 's%d' % sKVM, kslot * 8192 + e * 4096)
                        a.salu('s_add_u32', 's%d' % sT, 's%d' % sKSO, e * 4096)
                        a.dma(DK, SRD_K, 's%d' % sT, nt)
                        if e == 1: a.salu('s_add_u32', 's%d' % sKSO, 's%d' % sKSO, 8192)
                    items.append(f)
            if vslot is not None:
                for e in range(2):
                    def f(e=e):
                        a.salu('s_add_u32', 'm0', 's%d' % sKVM, 32768 + vslot * 8192 + e * 4096)
                        a.salu('s_add_u32', 's%d' % sT, 's%d' % sVSO, e * 4096)
                        a.dma(DV, SRD_V, 's%d' % sT, nt)
                        if e == 1: a.salu('s_add_u32', 's%d' % sVSO, 's%d' % sVSO, 8192)
                    items.append(f)
            return items
        pend = []; sidx = [0]
        def maybe_dma(pos):
            if not pend: return
            if spread:
                lab = 'K1_SP%d' % nlab[0]; nlab[0] += 1
                a.scmp('s_cmp_lg_u32', 's%d' % sSUB, pos & 3)
                a.branch('s_cbranch_scc1', lab)
                a.cond_begin()
                pend[sidx[0] + (pos >> 2)]()
                a.cond_end()
                a.label(lab, pad=False)
                if pos == 7: sidx[0] += 2
            else:
                if pos in ((1, 5) if role == 0 else (3, 7)):
                    pend[sidx[0]](); sidx[0] += 1
        def rk(slot, t):
            a.ds_read128(POOL + 4 * t, KA + t, slot * 8192, tag=('k', t))
        def qk(vslot):
            for t in range(8):
                maybe_dma(t)
                a.lds_need([('k', t)])
                a.mfma32(S, POOL + 4 * t, Q + 4 * t, C=(0 if t == 0 else 'same'))
                u = t >> 2; dt = t & 3
                for e in range(2):
                    a.ds_read_tr(POOL + 4 * t + 2 * e, VA + dt, 32768 + vslot * 8192 + (16 * u + 8 * e) * 256, tag=('v', t))
        def pv(kslot):
            for t in range(8):
                maybe_dma(t)
                u = t >> 2; dt = t & 3
                a.lds_need([('v', t)])
                a.mfma32(O + 16 * dt, POOL + 4 * t, S + 4 * u)
                if kslot is not None:
                    rk(kslot, t)
        def sm(tag):
            a.valu('v_max3_f32', v(T0), v(S), v(S + 1), v(S + 2))
            a.valu('v_max3_f32', v(T1), v(S + 3), v(S + 4), v(S + 5))
            a.valu('v_max3_f32', v(T0), v(T0), v(S + 6), v(S + 7))
            a.valu('v_max3_f32', v(T1), v(T1), v(S + 8), v(S + 9))
            a.valu('v_max3_f32', v(T0), v(T0), v(S + 10), v(S + 11))
            a.valu('v_max3_f32', v(T1), v(T1), v(S + 12), v(S + 13))
            a.valu('v_max3_f32', v(T0), v(T0), v(S + 14), v(S + 15))
            a.valu('v_max_f32', v(T0), v(T0), v(T1))
            a.valu('v_cmp_gt_f32', 'vcc', v(T0), v(THR))
            a.branch('s_cbranch_vccnz', 'K1_SLOW' + tag)
            a.label('K1_RET' + tag, pad=False)
            slow_paths.append(tag)
            for i in range(16):
                a.valu('v_fma_f32', v(S + i), v(S + i), 's%d' % sC, v(NEGMC))
            for i in range(16):
                a.valu('v_exp_f32', v(S + i), v(S + i), trans=True)
            for i in range(0, 16, 2):
                a.valu('v_add_f32', v(L0), v(L0), v(S + i))
                a.valu('v_add_f32', v(L1), v(L1), v(S + i + 1))
                a.valu('v_cvt_pk_bf16_f32', v(S + i // 2), v(S + i), v(S + i + 1))
        def stage(k, tag, first=False, lastst=False):
            j = k & 3
            iss = (k + depth) <= 31
            allowed = 4 * max(0, min(31, k + depth) - (k + 1))
            a.barrier()
            sidx[0] = 0
            pend[:] = dma_items((j + depth) & 3, (j + depth) & 3) if (loader and iss) else []
            if loader and k == wo_stage:
                for e in range(4):
                    def fwo(e=e):
                        a.salu('s_lshl_b32', 's%d' % sT, 's%d' % sW, 12)
                        a.salu('s_add_u32', 's%d' % sT, 's%d' % sT, e * 1024)
                        a.salu('s_add_u32', 'm0', 's%d' % sT, EXTRA)
                        a.dma(DV, SRD_WO, 's%d' % sT, False)
                    pend.append(fwo)
            if role == 0:
                for t in range(8): rk(j, t)
                qk(j); sm(tag); pv(None)
            elif role == 1:
                if first:
                    for t in range(8): rk(j, t)
                else:
                    pv(j)
                qk(j); sm(tag)
            else:
                if first:
                    for t in range(8): rk(j, t)
                else:
                    sm(tag); pv(j)
                qk(j)
            while sidx[0] < len(pend):
                pend[sidx[0]](); sidx[0] += 1
            pend[:] = []
            if not lastst:
                if loader: a.wait(vm=allowed, lgkm=0)
                else: a.wait(lgkm=0)
        if loader:
            a.salu('s_add_u32', 's%d' % sVSO, 's%d' % sKVS, 1 * 8192)
            a.salu('s_add_u32', 's%d' % sKSO, 's%d' % sKVS, 2 * 8192)
            for f in dma_items(None, 1): f()
            for g in range(2, depth):
                for f in dma_items(g, g): f()
        if role == 0: stamp()
        stage(0, R + 'p0', first=True)
        for j in range(1, 4):
            stage(j, R + 'p%d' % j)
        a.salu('s_mov_b32', 's%d' % sIT, 0)
        a.label('K1_LOOP' + R, pad=False)
        for j in range(4):
            stage(4 + j, R + 'a%d' % j)
        a.salu('s_add_u32', 's%d' % sIT, 's%d' % sIT, 1)
        a.scmp('s_cmp_lt_u32', 's%d' % sIT, 6)
        a.branch('s_cbranch_scc1', 'K1_LOOP' + R)
        if role == 0: stamp()
        stage(28, R + 'b0'); stage(29, R + 'b1'); stage(30, R + 'b2'); stage(31, R + 'b3', lastst=True)
        if role == 1:
            pv(None)
        elif role == 2:
            sm(R + 'z'); pv(None)
        a.wait(lgkm=0)
        if role < 2:
            a.nop_all()
            a.branch('s_branch', 'K1_EPI')
    a.label('K1_EPI')
    stamp()
    a.valu('v_add_f32', v(L0), v(L0), v(L1))
    a.valu('v_mov_b32', v(T0), v(L0))
    a.ins('v_permlane32_swap_b32 v%d, v%d' % (L0, T0), 'perm', [L0, T0], [L0, T0])
    a.valu('v_add_f32', v(L0), v(L0), v(T0))
    a.valu('v_rcp_f32', v(L0), v(L0), trans=True)
    a.valu('v_lshlrev_b32', v(T1), 4, v(LANE))
    a.valu('v_add_u32', v(TMP), 4096, v(T1))
    for dt in range(4):
        for r in range(16):
            a.valu('v_mul_f32', v(O + 16 * dt + r), v(O + 16 * dt + r), v(L0))
        for u in range(2):
            f = dt * 2 + u
            d = POOL + f * 4
            for i in range(4):
                a.valu('v_cvt_pk_bf16_f32', v(d + i), v(O + 16 * dt + 8 * u + 2 * i), v(O + 16 * dt + 8 * u + 2 * i + 1))
            a.bstore128(d, T1 if f < 4 else TMP, SRD_O, '0', (f & 3) * 1024)
    a.wait(vm=0)
    if stamps:
        stamp()
        a.wait(lgkm=0)
        a.scmp('s_cmp_lg_u32', 's%d' % sW, 0)
        a.branch('s_cbranch_scc1', 'K1_END')
        a.other('s_load_dwordx2 s[4:5], s[0:1], 96')
        a.wait(lgkm=0)
        a.salu('s_lshl_b32', 's3', 's2', 6)
        a.salu('s_add_u32', 's3', 's3', 64 << 20)
        a.salu('s_add_u32', 's4', 's4', 's3')
        a.salu('s_addc_u32', 's5', 's5', 0)
        a.salu('s_mov_b32', 's6', 64)
        a.salu('s_mov_b32', 's7', '0x00020000')
        a.valu('v_mov_b32', v(T0), 0)
        for i in range(nst[0]):
            a.valu('v_mov_b32', v(POOL), 's%d' % (70 + 2 * i))
            a.bstore32(POOL, T0, 4, '0', 4 * i)
            a.valu('v_mov_b32', v(POOL + 1), 's%d' % (84 + 2 * i))
            a.bstore32(POOL + 1, T0, 4, '0', 32 + 4 * i)
    a.label('K1_END')
    a.other('s_endpgm')
    for tag in slow_paths:
        a.label('K1_SLOW' + tag)
        a.valu('v_mov_b32', v(T1), v(T0))
        a.ins('v_permlane32_swap_b32 v%d, v%d' % (T0, T1), 'perm', [T0, T1], [T0, T1])
        a.valu('v_max3_f32', v(T0), v(T0), v(T1), v(MRUN))
        a.valu('v_sub_f32', v(T1), v(MRUN), v(T0))
        a.valu('v_mul_f32', v(T1), 's%d' % sC, v(T1))
        a.valu('v_exp_f32', v(T1), v(T1), trans=True)
        a.valu('v_mov_b32', v(MRUN), v(T0))
        a.valu('v_add_f32', v(THR), 's%d' % sTC, v(T0))
        a.valu('v_mul_f32', v(NEGMC), 's%d' % sC, v(T0))
        a.valu('v_sub_f32', v(NEGMC), 0, v(NEGMC))
        a.valu('v_mul_f32', v(L0), v(L0), v(T1))
        a.valu('v_mul_f32', v(L1), v(L1), v(T1))
        for r in range(64):
            a.valu('v_mul_f32', v(O + r), v(O + r), v(T1))
        a.nop_all()
        a.branch('s_branch', 'K1_RET' + tag)

def kd(name, nv, ns=100):
    return '''.section .rodata,"a"
.p2align 6
.amdhsa_kernel %s
  .amdhsa_next_free_vgpr %d
  .amdhsa_next_free_sgpr %d
  .amdhsa_accum_offset %d
  .amdhsa_group_segment_fixed_size 0
  .amdhsa_kernarg_size 104
  .amdhsa_user_sgpr_count 2
  .amdhsa_user_sgpr_kernarg_segment_ptr 1
  .amdhsa_system_sgpr_workgroup_id_x 1
.end_amdhsa_kernel
''' % (name, nv, ns, (nv + 3) // 4 * 4)
```

```python
from asmlib import Asm
ACC = 0
OF = 96
WF = 192
WA = 208
DW = 210; VO = 211; LANE = 212; T0 = 213; T1 = 214; T2 = 215; RA = 216; T3 = 217
NV = 220
SRD_O = 8; SRD_W = 12; SRD_OUT = 16
sW = 20; sBLK = 21; sB = 22; sQH = 23; sNT = 24; sM0 = 25; sWSO = 26; sT = 27; sOSO = 28

def gen_k2(a: Asm, name, stamps=False, nomfma=False, depth=3, ro=0, rw=0, noo=0, now=0):
    v = a.vr
    nst = [0]
    def stamp():
        if not stamps: return
        a.other('s_memrealtime s[%d:%d]' % (40 + 2 * nst[0], 41 + 2 * nst[0]))
        nst[0] += 1
    a.raw('.p2align 8'); a.raw('.type %s,@function' % name); a.raw(name + ':')
    a.scmp('s_cmp_ge_u32', 's2', 256)
    a.branch('s_cbranch_scc1', 'K2_END')
    stamp()
    a.salu('s_and_b32', 's3', 's2', 7)
    a.salu('s_lshr_b32', 's4', 's2', 3)
    a.salu('s_and_b32', 's%d' % sBLK, 's3', 1)
    a.salu('s_lshr_b32', 's5', 's3', 1)
    a.salu('s_lshl_b32', 's5', 's5', 1)
    a.salu('s_and_b32', 's6', 's4', 1)
    a.salu('s_add_u32', 's%d' % sB, 's5', 's6')
    a.salu('s_bfe_u32', 's%d' % sQH, 's4', '0x10001')
    a.salu('s_lshr_b32', 's%d' % sNT, 's4', 2)
    a.salu('s_mul_i32', 's5', 's%d' % sBLK, 40)
    a.salu('s_add_u32', 's6', 's0', 's5')
    a.salu('s_addc_u32', 's7', 's1', 0)
    a.other('s_load_dwordx2 s[30:31], s[6:7], 32')
    a.other('s_load_dwordx2 s[32:33], s[0:1], 80')
    a.other('s_load_dwordx2 s[34:35], s[0:1], 96')
    a.valu('v_and_b32', v(LANE), 63, 'v0')
    a.valu('v_lshrrev_b32', v(T0), 6, 'v0')
    a.rfl(sW, T0)
    a.wait(lgkm=0)
    a.salu('s_lshl_b32', 's3', 's%d' % sBLK, 3)
    a.salu('s_add_u32', 's3', 's3', 's%d' % sB)
    a.salu('s_mul_i32', 's3', 's3', 6)
    a.salu('s_mul_i32', 's4', 's%d' % sQH, 3)
    a.salu('s_add_u32', 's3', 's3', 's4')
    a.salu('s_lshl_b32', 's3', 's3', 18)
    a.salu('s_add_u32', 's%d' % SRD_O, 's34', 's3')
    a.salu('s_addc_u32', 's%d' % (SRD_O + 1), 's35', 0)
    a.salu('s_mov_b32', 's%d' % (SRD_O + 2), 3 * 262144)
    a.salu('s_mov_b32', 's%d' % (SRD_O + 3), '0x00020000')
    a.salu('s_lshl_b32', 's3', 's%d' % sNT, 7)
    a.salu('s_add_u32', 's%d' % SRD_W, 's30', 's3')
    a.salu('s_addc_u32', 's%d' % (SRD_W + 1), 's31', 0)
    a.salu('s_sub_u32', 's%d' % (SRD_W + 2), 4194304, 's3')
    a.salu('s_mov_b32', 's%d' % (SRD_W + 3), '0x00020000')
    a.salu('s_mul_i32', 's3', 's%d' % sB, 192)
    a.salu('s_mul_i32', 's4', 's%d' % sQH, 96)
    a.salu('s_add_u32', 's3', 's3', 's4')
    a.salu('s_lshl_b32', 's3', 's3', 11)
    a.salu('s_lshl_b32', 's4', 's%d' % sBLK, 10)
    a.salu('s_add_u32', 's3', 's3', 's4')
    a.salu('s_lshl_b32', 's4', 's%d' % sNT, 7)
    a.salu('s_add_u32', 's3', 's3', 's4')
    a.salu('s_add_u32', 's%d' % SRD_OUT, 's32', 's3')
    a.salu('s_addc_u32', 's%d' % (SRD_OUT + 1), 's33', 0)
    a.salu('s_sub_u32', 's%d' % (SRD_OUT + 2), 8 * 192 * 2048, 's3')
    a.salu('s_mov_b32', 's%d' % (SRD_OUT + 3), '0x00020000')
    a.salu('s_lshl_b32', 's%d' % sM0, 's%d' % sW, 14)
    a.salu('s_lshl_b32', 's%d' % sWSO, 's%d' % sW, 19)
    a.salu('s_lshl_b32', 's%d' % sOSO, 's%d' % sW, 15)
    a.valu('v_bfe_u32', v(T0), v(LANE), 4, 1)
    a.valu('v_lshlrev_b32', v(T0), 1, v(T0))
    a.valu('v_and_b32', v(T1), 7, v(LANE))
    a.valu('v_xor_b32', v(T0), v(T0), v(T1))
    a.valu('v_lshlrev_b32', v(T0), 4, v(T0))
    a.valu('v_lshrrev_b32', v(T1), 3, v(LANE))
    a.valu('v_lshl_add_u32', v(DW), v(T1), 10, v(T0))
    a.valu('v_lshlrev_b32', v(VO), 4, v(LANE))
    a.valu('v_lshrrev_b32', v(T0), 5, v(LANE))
    a.valu('v_bfe_u32', v(T1), v(LANE), 2, 2)
    a.valu('v_lshl_add_u32', v(T0), v(T0), 2, v(T1))
    a.valu('v_lshlrev_b32', v(T0), 7, v(T0))
    a.valu('v_lshrrev_b32', v(T1), 1, v(T1))
    a.valu('v_lshl_add_u32', v(T0), v(T1), 5, v(T0))
    a.valu('v_bfe_u32', v(T1), v(LANE), 4, 1)
    a.valu('v_lshl_add_u32', v(T0), v(T1), 4, v(T0))
    a.valu('v_and_b32', v(T1), 1, v(LANE))
    a.valu('v_lshl_add_u32', v(T0), v(T1), 6, v(T0))
    a.valu('v_bfe_u32', v(T1), v(LANE), 1, 1)
    a.valu('v_lshl_add_u32', v(T0), v(T1), 3, v(T0))
    a.valu('v_add_u32', v(WA), 's%d' % sM0, v(T0))
    a.valu('v_xor_b32', v(WA + 1), 32, v(WA))

    a.salu('s_lshr_b32', 's3', 's2', 3)
    a.salu('s_and_b32', 's3', 's3', 3)
    a.salu('s_mul_i32', 's3', 's3', rw)
    a.salu('s_mul_i32', 's4', 's%d' % sNT, ro)
    a.salu('s_add_u32', 's3', 's3', 's4')
    a.salu('s_and_b32', 's3', 's3', 15)
    a.salu('s_lshl_b32', 's36', 's3', 11)
    a.salu('s_lshl_b32', 's37', 's3', 15)
    def issue(c):
        sl = c & 3
        a.salu('s_add_u32', 's38', 's%d' % sWSO, 's37')
        a.salu('s_add_u32', 's39', 's%d' % sOSO, 's36')
        a.salu('s_add_u32', 's36', 's36', 2048); a.salu('s_and_b32', 's36', 's36', 32767)
        a.salu('s_add_u32', 's37', 's37', 32768); a.salu('s_and_b32', 's37', 's37', 524287)
        for j in range(4):
            a.salu('s_add_u32', 'm0', 's%d' % sM0, sl * 4096 + j * 1024)
            a.salu('s_add_u32', 's%d' % sT, 's38', (j * 8) * 1024)
            if not now: a.dma(DW, SRD_W, 's%d' % sT)
        for qt in range(3):
            a.salu('s_add_u32', 's%d' % sT, 's39', qt * 262144)
            for u2 in range(2):
                if not noo: a.bload128(OF + sl * 24 + (qt * 2 + u2) * 4, VO, SRD_O, 's%d' % sT, u2 * 1024)
    for c in range(depth):
        issue(c)
    stamp()
    for c in range(16):
        sl = c & 3
        if c + depth < 16:
            issue(c + depth)
        rem = min(depth, 15 - c)
        a.wait(vm=(10 - 6 * noo - 4 * now) * rem)
        for u2 in range(2):
            for nt in range(2):
                for e in range(2):
                    a.ds_read_tr(WF + (nt * 2 + u2) * 4 + 2 * e, WA + nt, sl * 4096 + (16 * u2 + 8 * e) * 128)
        for u2 in range(2):
            a.wait(lgkm=(4 if u2 == 0 else 0))
            for qt in range(3):
                for nt in range(2):
                    if nomfma and c > 0: continue
                    a.mfma32(ACC + (qt * 2 + nt) * 16, WF + (nt * 2 + u2) * 4, OF + sl * 24 + (qt * 2 + u2) * 4, C=(0 if (c == 0 and u2 == 0) else 'same'))
    stamp()
    if stamps:
        a.wait(lgkm=0)
        a.salu('s_lshl_b32', 's3', 's2', 3)
        a.salu('s_add_u32', 's3', 's3', 's%d' % sW)
        a.salu('s_lshl_b32', 's3', 's3', 2)
        a.salu('s_add_u32', 's3', 's3', 67 << 20)
        a.salu('s_add_u32', 's4', 's34', 's3')
        a.salu('s_addc_u32', 's5', 's35', 0)
        a.salu('s_mov_b32', 's6', 64)
        a.salu('s_mov_b32', 's7', '0x00020000')
        a.valu('v_mov_b32', v(T0), 0)
        a.valu('v_mov_b32', v(T1), 's44')
        a.bstore32(T1, T0, 4, '0', 0)
    a.barrier()
    stamp()
    a.valu('v_lshlrev_b32', v(RA), 4, v(LANE))
    a.salu('s_mul_i32', 's3', 's%d' % sW, 12288)
    a.valu('v_add_u32', v(T0), 's3', v(RA))
    a.salu('s_xor_b32', 's4', 's%d' % sW, 4)
    a.salu('s_mul_i32', 's4', 's4', 12288)
    a.valu('v_add_u32', v(T1), 's4', v(RA))
    a.scmp('s_cmp_lt_u32', 's%d' % sW, 4)
    a.branch('s_cbranch_scc0', 'K2_P1B')
    for r in range(0, 48, 4):
        a.ds_write128(T0, ACC + 48 + r, (r // 4) * 1024)
    a.branch('s_branch', 'K2_P1C')
    a.label('K2_P1B')
    for r in range(0, 48, 4):
        a.ds_write128(T0, ACC + r, (r // 4) * 1024)
    for r in range(48):
        a.valu('v_mov_b32', v(ACC + r), v(ACC + 48 + r))
    a.label('K2_P1C')
    a.wait(lgkm=0)
    a.barrier()
    for r in range(0, 48, 4):
        a.ds_read128(OF + r, T1, (r // 4) * 1024)
    a.wait(lgkm=0)
    for r in range(48):
        a.valu('v_add_f32', v(ACC + r), v(ACC + r), v(OF + r))
    a.barrier()
    for r in range(0, 48, 4):
        a.ds_write128(T0, ACC + r, (r // 4) * 1024)
    a.wait(lgkm=0)
    a.barrier()
    a.salu('s_and_b32', 's3', 's%d' % sW, 3)
    a.scmp('s_cmp_eq_u32', 's3', 3)
    a.branch('s_cbranch_scc1', 'K2_END')
    a.salu('s_and_b32', 's4', 's%d' % sW, 4)
    a.salu('s_mul_i32', 's4', 's4', 12288)
    a.salu('s_lshl_b32', 's5', 's3', 12)
    a.salu('s_add_u32', 's4', 's4', 's5')
    a.valu('v_add_u32', v(T1), 's4', v(RA))
    for ww in range(3):
        pass
    for ww in range(4):
        for r in range(0, 16, 4):
            a.ds_read128(OF + ww * 16 + r, T1, ww * 12288 + (r // 4) * 1024)
    a.wait(lgkm=0)
    for r in range(16):
        a.valu('v_add_f32', v(OF + r), v(OF + r), v(OF + 16 + r))
        a.valu('v_add_f32', v(OF + 32 + r), v(OF + 32 + r), v(OF + 48 + r))
        a.valu('v_add_f32', v(OF + r), v(OF + r), v(OF + 32 + r))
    for i in range(8):
        a.valu('v_cvt_pk_bf16_f32', v(OF + 64 + i), v(OF + 2 * i), v(OF + 2 * i + 1))
    a.salu('s_lshr_b32', 's4', 's%d' % sW, 2)
    a.salu('s_mul_i32', 's4', 's4', 3)
    a.salu('s_add_u32', 's4', 's4', 's3')
    a.salu('s_lshr_b32', 's5', 's4', 1)
    a.salu('s_and_b32', 's6', 's4', 1)
    a.salu('s_lshl_b32', 's5', 's5', 16)
    a.salu('s_lshl_b32', 's6', 's6', 5)
    a.salu('s_add_u32', 's5', 's5', 's6')
    a.valu('v_and_b32', v(T0), 31, v(LANE))
    a.valu('v_lshlrev_b32', v(T0), 11, v(T0))
    a.valu('v_lshrrev_b32', v(T1), 5, v(LANE))
    a.valu('v_lshl_add_u32', v(T0), v(T1), 6, v(T0))
    a.bstore128(OF + 64, T0, SRD_OUT, 's5', 0)
    a.bstore128(OF + 68, T0, SRD_OUT, 's5', 16)
    if stamps:
        a.wait(vm=0)
        stamp()
        a.wait(lgkm=0)
        a.scmp('s_cmp_lg_u32', 's%d' % sW, 0)
        a.branch('s_cbranch_scc1', 'K2_END')
        a.salu('s_lshl_b32', 's3', 's2', 6)
        a.salu('s_add_u32', 's3', 's3', 66 << 20)
        a.salu('s_add_u32', 's4', 's34', 's3')
        a.salu('s_addc_u32', 's5', 's35', 0)
        a.salu('s_mov_b32', 's6', 64)
        a.salu('s_mov_b32', 's7', '0x00020000')
        a.valu('v_mov_b32', v(T0), 0)
        for i in range(nst[0]):
            a.valu('v_mov_b32', v(T1), 's%d' % (40 + 2 * i))
            a.bstore32(T1, T0, 4, '0', 4 * i)
    a.label('K2_END')
    a.other('s_endpgm')
```

```python
import sys
from asmlib import Asm
import k1, k2
hdr = open('concat_heads__mha_block_cached__mha_block_cached__near_ridge.s.ref').read().split('\n')
hdr = [l for l in hdr if l.startswith(';') and '@launch' not in l and 'Override launch' not in l and 'grid=ceil' not in l]
a = Asm()
for l in hdr: a.raw(l)
a.raw('; @launch kernel=attn_kernel grid=(256,1,1) block=(768,1,1) lds=163840')
a.raw('; @launch kernel=oproj_kernel grid=(256,1,1) block=(512,1,1) lds=131072')
a.raw('.amdgcn_target "amdgcn-amd-amdhsa--gfx950"')
a.raw('.text')
a.raw('.globl attn_kernel')
k1.gen_k1(a, 'attn_kernel', stamps=('stamps' in sys.argv))
a.reset_haz()
a.raw('.globl oproj_kernel')
kw = {}
for x in sys.argv[2:]:
    if '=' in x:
        k, val = x.split('='); kw[k] = int(val)
k2.gen_k2(a, 'oproj_kernel', stamps=('stamps' in sys.argv), **kw)
a.raw(k1.kd('attn_kernel', k1.NV))
a.raw(k1.kd('oproj_kernel', k2.NV))
out = sys.argv[1] if len(sys.argv) > 1 else 'concat_heads__mha_block_cached__mha_block_cached__near_ridge.s'
open(out, 'w').write(a.text())
print('nops', a.nnop, 'lines', len(a.lines))
```

```python
import sys
from asmlib import Asm
import k2
import importlib
k1 = importlib.import_module("k1_v2" if "v2" in sys.argv else "k1")
hdr = open('concat_heads__mha_block_cached__mha_block_cached__near_ridge.s.ref').read().split('\n')
hdr = [l for l in hdr if l.startswith(';') and '@launch' not in l and 'Override launch' not in l and 'grid=ceil' not in l]
a = Asm()
for l in hdr: a.raw(l)
a.raw('; @launch kernel=attn_kernel grid=(256,1,1) block=(768,1,1) lds=163840')
a.raw('; @launch kernel=oproj_kernel grid=(256,1,1) block=(512,1,1) lds=131072')
a.raw('.amdgcn_target "amdgcn-amd-amdhsa--gfx950"')
a.raw('.text')
a.raw('.globl attn_kernel')
kw1 = {}
for x in sys.argv[2:]:
    if x.startswith('k1.'):
        k, val = x[3:].split('='); kw1[k] = int(val)
k1.gen_k1(a, 'attn_kernel', stamps=('stamps' in sys.argv), **kw1)
a.reset_haz()
a.raw('.globl oproj_kernel')
kw = {}
for x in sys.argv[2:]:
    if '=' in x and not x.startswith('k1.'):
        k, val = x.split('='); kw[k] = int(val)
k2.gen_k2(a, 'oproj_kernel', stamps=('stamps' in sys.argv), **kw)
a.raw(k1.kd('attn_kernel', k1.NV))
a.raw(k1.kd('oproj_kernel', k2.NV))
out = sys.argv[1] if len(sys.argv) > 1 else 'concat_heads__mha_block_cached__mha_block_cached__near_ridge.s'
open(out, 'w').write(a.text())
print('nops', a.nnop, 'lines', len(a.lines))
```

```python
from asmlib import Asm
NV = 96
def gen_k2r(a: Asm, name, xmap=1):
    v = a.vr
    a.raw('.p2align 8'); a.raw('.type %s,@function' % name); a.raw(name + ':')
    a.scmp('s_cmp_ge_u32', 's2', 256)
    a.branch('s_cbranch_scc1', 'K2_END')
    a.other('s_load_dwordx2 s[32:33], s[0:1], 80')
    a.other('s_load_dwordx2 s[34:35], s[0:1], 96')
    a.salu('s_and_b32', 's3', 's2', 7)
    a.salu('s_lshr_b32', 's4', 's2', 3)
    a.salu('s_and_b32', 's21', 's3', 1)
    a.salu('s_lshr_b32', 's5', 's3', 1)
    a.salu('s_lshl_b32', 's5', 's5', 1)
    a.salu('s_lshr_b32', 's6', 's4', 4)
    a.salu('s_add_u32', 's22', 's5', 's6')
    a.salu('s_and_b32', 's23', 's4', 15)
    a.valu('v_and_b32', v(90), 63, 'v0')
    a.valu('v_lshrrev_b32', v(91), 6, 'v0')
    a.rfl(20, 91)
    a.salu('s_lshr_b32', 's24', 's20', 1)
    a.salu('s_and_b32', 's25', 's20', 1)
    a.salu('s_lshl_b32', 's3', 's21', 3)
    a.salu('s_add_u32', 's3', 's3', 's22')
    a.salu('s_mul_i32', 's3', 's3', 16 * 196608)
    a.salu('s_lshr_b32', 's4', 's23', 3)
    a.salu('s_lshl_b32', 's4', 's4', 14)
    a.salu('s_bfe_u32', 's5', 's23', '0x10002')
    a.salu('s_lshl_b32', 's5', 's5', 13)
    a.salu('s_add_u32', 's4', 's4', 's5')
    a.salu('s_and_b32', 's5', 's23', 3)
    a.salu('s_lshl_b32', 's5', 's5', 11)
    a.salu('s_add_u32', 's4', 's4', 's5')
    a.salu('s_lshl_b32', 's5', 's24', 15)
    a.salu('s_add_u32', 's4', 's4', 's5')
    a.salu('s_lshl_b32', 's5', 's25', 10)
    a.salu('s_add_u32', 's4', 's4', 's5')
    a.salu('s_add_u32', 's3', 's3', 's4')
    a.salu('s_mul_i32', 's4', 's22', 192)
    a.salu('s_lshl_b32', 's5', 's24', 5)
    a.salu('s_add_u32', 's4', 's4', 's5')
    a.salu('s_lshl_b32', 's4', 's4', 11)
    a.salu('s_lshl_b32', 's5', 's21', 10)
    a.salu('s_add_u32', 's4', 's4', 's5')
    a.salu('s_lshl_b32', 's5', 's23', 6)
    a.salu('s_add_u32', 's4', 's4', 's5')
    a.salu('s_lshl_b32', 's5', 's25', 5)
    a.salu('s_add_u32', 's4', 's4', 's5')
    a.valu('v_lshlrev_b32', v(92), 4, v(90))
    a.valu('v_and_b32', v(93), 31, v(90))
    a.valu('v_lshlrev_b32', v(93), 11, v(93))
    a.valu('v_lshrrev_b32', v(94), 5, v(90))
    a.valu('v_lshl_add_u32', v(93), v(94), 4, v(93))
    a.wait(lgkm=0)
    a.salu('s_add_u32', 's8', 's34', 's3')
    a.salu('s_addc_u32', 's9', 's35', 0)
    a.salu('s_mov_b32', 's10', 15 * 196608 + 1024)
    a.salu('s_mov_b32', 's11', '0x00020000')
    a.salu('s_add_u32', 's12', 's32', 's4')
    a.salu('s_addc_u32', 's13', 's33', 0)
    a.salu('s_sub_u32', 's14', 8 * 192 * 2048, 's4')
    a.salu('s_mov_b32', 's15', '0x00020000')
    for hp in range(16):
        a.salu('s_mov_b32', 's%d' % (40 + hp), hp * 196608)
    for hp in range(16):
        a.bload128(4 * hp, 92, 8, 's%d' % (40 + hp), 0)
    A = 64
    for hp in range(16):
        a.wait(vm=15 - hp)
        for r in range(4):
            src = 4 * hp + r
            if hp == 0:
                a.valu('v_lshlrev_b32', v(A + 2 * r), 16, v(src))
                a.valu('v_and_b32', v(A + 2 * r + 1), '0xffff0000', v(src))
            else:
                t = 72 + 2 * r
                a.valu('v_lshlrev_b32', v(t), 16, v(src))
                a.valu('v_and_b32', v(t + 1), '0xffff0000', v(src))
                a.valu('v_add_f32', v(A + 2 * r), v(A + 2 * r), v(t))
                a.valu('v_add_f32', v(A + 2 * r + 1), v(A + 2 * r + 1), v(t + 1))
    for r in range(4):
        a.valu('v_cvt_pk_bf16_f32', v(80 + r), v(A + 2 * r), v(A + 2 * r + 1))
    a.ins('v_permlane32_swap_b32 v80, v82', 'perm', [80, 82], [80, 82])
    a.ins('v_permlane32_swap_b32 v81, v83', 'perm', [81, 83], [81, 83])
    a.bstore128(80, 93, 12, '0', 0)
    a.label('K2_END')
    a.other('s_endpgm')
```

```python
from asmlib import Asm
ACC = 0
OF = 96
WF = 192
WA = 208
DW = 210; VO = 211; LANE = 212; T0 = 213; T1 = 214; T2 = 215; RA = 216; T3 = 217
NV = 220
SRD_O = 8; SRD_W = 12; SRD_OUT = 16
sW = 20; sBLK = 21; sB = 22; sQH = 23; sNT = 24; sM0 = 25; sWSO = 26; sT = 27; sOSO = 28

def gen_k2(a: Asm, name, stamps=False, nomfma=False, depth=3, ro=0, rw=0, noo=0, now=0, knt=0):
    v = a.vr
    nst = [0]
    def stamp():
        if not stamps: return
        a.other('s_memrealtime s[%d:%d]' % (40 + 2 * nst[0], 41 + 2 * nst[0]))
        nst[0] += 1
    a.raw('.p2align 8'); a.raw('.type %s,@function' % name); a.raw(name + ':')
    a.scmp('s_cmp_ge_u32', 's2', 256)
    a.branch('s_cbranch_scc1', 'K2_END')
    stamp()
    a.salu('s_and_b32', 's3', 's2', 7)
    a.salu('s_lshr_b32', 's4', 's2', 3)
    a.salu('s_and_b32', 's%d' % sBLK, 's3', 1)
    a.salu('s_lshr_b32', 's5', 's3', 1)
    a.salu('s_lshl_b32', 's5', 's5', 1)
    a.salu('s_and_b32', 's6', 's4', 1)
    a.salu('s_add_u32', 's%d' % sB, 's5', 's6')
    a.salu('s_bfe_u32', 's%d' % sQH, 's4', '0x10001')
    a.salu('s_lshr_b32', 's%d' % sNT, 's4', 2)
    a.salu('s_mul_i32', 's5', 's%d' % sBLK, 40)
    a.salu('s_add_u32', 's6', 's0', 's5')
    a.salu('s_addc_u32', 's7', 's1', 0)
    a.other('s_load_dwordx2 s[30:31], s[6:7], 32')
    a.other('s_load_dwordx2 s[32:33], s[0:1], 80')
    a.other('s_load_dwordx2 s[34:35], s[0:1], 96')
    a.valu('v_and_b32', v(LANE), 63, 'v0')
    a.valu('v_lshrrev_b32', v(T0), 6, 'v0')
    a.rfl(sW, T0)
    a.wait(lgkm=0)
    a.salu('s_lshl_b32', 's3', 's%d' % sBLK, 3)
    a.salu('s_add_u32', 's3', 's3', 's%d' % sB)
    a.salu('s_mul_i32', 's3', 's3', 6)
    a.salu('s_mul_i32', 's4', 's%d' % sQH, 3)
    a.salu('s_add_u32', 's3', 's3', 's4')
    a.salu('s_lshl_b32', 's3', 's3', 18)
    a.salu('s_add_u32', 's%d' % SRD_O, 's34', 's3')
    a.salu('s_addc_u32', 's%d' % (SRD_O + 1), 's35', 0)
    a.salu('s_mov_b32', 's%d' % (SRD_O + 2), 3 * 262144)
    a.salu('s_mov_b32', 's%d' % (SRD_O + 3), '0x00020000')
    a.salu('s_lshl_b32', 's3', 's%d' % sNT, 7)
    a.salu('s_add_u32', 's%d' % SRD_W, 's30', 's3')
    a.salu('s_addc_u32', 's%d' % (SRD_W + 1), 's31', 0)
    a.salu('s_sub_u32', 's%d' % (SRD_W + 2), 4194304, 's3')
    a.salu('s_mov_b32', 's%d' % (SRD_W + 3), '0x00020000')
    a.salu('s_mul_i32', 's3', 's%d' % sB, 192)
    a.salu('s_mul_i32', 's4', 's%d' % sQH, 96)
    a.salu('s_add_u32', 's3', 's3', 's4')
    a.salu('s_lshl_b32', 's3', 's3', 11)
    a.salu('s_lshl_b32', 's4', 's%d' % sBLK, 10)
    a.salu('s_add_u32', 's3', 's3', 's4')
    a.salu('s_lshl_b32', 's4', 's%d' % sNT, 7)
    a.salu('s_add_u32', 's3', 's3', 's4')
    a.salu('s_add_u32', 's%d' % SRD_OUT, 's32', 's3')
    a.salu('s_addc_u32', 's%d' % (SRD_OUT + 1), 's33', 0)
    a.salu('s_sub_u32', 's%d' % (SRD_OUT + 2), 8 * 192 * 2048, 's3')
    a.salu('s_mov_b32', 's%d' % (SRD_OUT + 3), '0x00020000')
    a.salu('s_lshl_b32', 's%d' % sM0, 's%d' % sW, 14)
    a.salu('s_lshl_b32', 's%d' % sWSO, 's%d' % sW, 19)
    a.salu('s_lshl_b32', 's%d' % sOSO, 's%d' % sW, 15)
    a.valu('v_bfe_u32', v(T0), v(LANE), 4, 1)
    a.valu('v_lshlrev_b32', v(T0), 1, v(T0))
    a.valu('v_and_b32', v(T1), 7, v(LANE))
    a.valu('v_xor_b32', v(T0), v(T0), v(T1))
    a.valu('v_lshlrev_b32', v(T0), 4, v(T0))
    a.valu('v_lshrrev_b32', v(T1), 3, v(LANE))
    a.valu('v_lshl_add_u32', v(DW), v(T1), 10, v(T0))
    a.valu('v_lshlrev_b32', v(VO), 4, v(LANE))
    a.valu('v_lshrrev_b32', v(T0), 5, v(LANE))
    a.valu('v_bfe_u32', v(T1), v(LANE), 2, 2)
    a.valu('v_lshl_add_u32', v(T0), v(T0), 2, v(T1))
    a.valu('v_lshlrev_b32', v(T0), 7, v(T0))
    a.valu('v_lshrrev_b32', v(T1), 1, v(T1))
    a.valu('v_lshl_add_u32', v(T0), v(T1), 5, v(T0))
    a.valu('v_bfe_u32', v(T1), v(LANE), 4, 1)
    a.valu('v_lshl_add_u32', v(T0), v(T1), 4, v(T0))
    a.valu('v_and_b32', v(T1), 1, v(LANE))
    a.valu('v_lshl_add_u32', v(T0), v(T1), 6, v(T0))
    a.valu('v_bfe_u32', v(T1), v(LANE), 1, 1)
    a.valu('v_lshl_add_u32', v(T0), v(T1), 3, v(T0))
    a.valu('v_add_u32', v(WA), 's%d' % sM0, v(T0))
    a.valu('v_xor_b32', v(WA + 1), 32, v(WA))

    a.salu('s_lshr_b32', 's3', 's2', 3)
    a.salu('s_and_b32', 's3', 's3', 3)
    a.salu('s_mul_i32', 's3', 's3', rw)
    a.salu('s_mul_i32', 's4', 's%d' % sNT, ro)
    a.salu('s_add_u32', 's3', 's3', 's4')
    a.salu('s_and_b32', 's3', 's3', 15)
    a.salu('s_lshl_b32', 's36', 's3', 11)
    a.salu('s_lshl_b32', 's37', 's3', 15)
    def issue(c):
        sl = c & 3
        a.salu('s_add_u32', 's38', 's%d' % sWSO, 's37')
        a.salu('s_add_u32', 's39', 's%d' % sOSO, 's36')
        a.salu('s_add_u32', 's36', 's36', 2048); a.salu('s_and_b32', 's36', 's36', 32767)
        a.salu('s_add_u32', 's37', 's37', 32768); a.salu('s_and_b32', 's37', 's37', 524287)
        for j in range(4):
            a.salu('s_add_u32', 'm0', 's%d' % sM0, sl * 4096 + j * 1024)
            a.salu('s_add_u32', 's%d' % sT, 's38', (j * 8) * 1024)
            if not now: a.dma(DW, SRD_W, 's%d' % sT, bool(knt & 1))
        for qt in range(3):
            a.salu('s_add_u32', 's%d' % sT, 's39', qt * 262144)
            for u2 in range(2):
                if not noo: a.bload128(OF + sl * 24 + (qt * 2 + u2) * 4, VO, SRD_O, 's%d' % sT, u2 * 1024, extra=(' nt' if knt & 2 else ''))
    for c in range(depth):
        issue(c)
    stamp()
    for c in range(16):
        sl = c & 3
        if c + depth < 16:
            issue(c + depth)
        rem = min(depth, 15 - c)
        a.wait(vm=(10 - 6 * noo - 4 * now) * rem)
        for u2 in range(2):
            for nt in range(2):
                for e in range(2):
                    a.ds_read_tr(WF + (nt * 2 + u2) * 4 + 2 * e, WA + nt, sl * 4096 + (16 * u2 + 8 * e) * 128)
        for u2 in range(2):
            a.wait(lgkm=(4 if u2 == 0 else 0))
            for qt in range(3):
                for nt in range(2):
                    if nomfma and c > 0: continue
                    a.mfma32(ACC + (qt * 2 + nt) * 16, WF + (nt * 2 + u2) * 4, OF + sl * 24 + (qt * 2 + u2) * 4, C=(0 if (c == 0 and u2 == 0) else 'same'))
    stamp()
    if stamps:
        a.wait(lgkm=0)
        a.salu('s_lshl_b32', 's3', 's2', 3)
        a.salu('s_add_u32', 's3', 's3', 's%d' % sW)
        a.salu('s_lshl_b32', 's3', 's3', 2)
        a.salu('s_add_u32', 's3', 's3', 67 << 20)
        a.salu('s_add_u32', 's4', 's34', 's3')
        a.salu('s_addc_u32', 's5', 's35', 0)
        a.salu('s_mov_b32', 's6', 64)
        a.salu('s_mov_b32', 's7', '0x00020000')
        a.valu('v_mov_b32', v(T0), 0)
        a.valu('v_mov_b32', v(T1), 's44')
        a.bstore32(T1, T0, 4, '0', 0)
    a.barrier()
    stamp()
    a.valu('v_lshlrev_b32', v(RA), 4, v(LANE))
    a.salu('s_mul_i32', 's3', 's%d' % sW, 12288)
    a.valu('v_add_u32', v(T0), 's3', v(RA))
    a.salu('s_xor_b32', 's4', 's%d' % sW, 4)
    a.salu('s_mul_i32', 's4', 's4', 12288)
    a.valu('v_add_u32', v(T1), 's4', v(RA))
    a.scmp('s_cmp_lt_u32', 's%d' % sW, 4)
    a.branch('s_cbranch_scc0', 'K2_P1B')
    for r in range(0, 48, 4):
        a.ds_write128(T0, ACC + 48 + r, (r // 4) * 1024)
    a.branch('s_branch', 'K2_P1C')
    a.label('K2_P1B')
    for r in range(0, 48, 4):
        a.ds_write128(T0, ACC + r, (r // 4) * 1024)
    for r in range(48):
        a.valu('v_mov_b32', v(ACC + r), v(ACC + 48 + r))
    a.label('K2_P1C')
    a.wait(lgkm=0)
    a.barrier()
    for r in range(0, 48, 4):
        a.ds_read128(OF + r, T1, (r // 4) * 1024)
    a.wait(lgkm=0)
    for r in range(48):
        a.valu('v_add_f32', v(ACC + r), v(ACC + r), v(OF + r))
    a.barrier()
    for r in range(0, 48, 4):
        a.ds_write128(T0, ACC + r, (r // 4) * 1024)
    a.wait(lgkm=0)
    a.barrier()
    a.salu('s_and_b32', 's3', 's%d' % sW, 3)
    a.scmp('s_cmp_eq_u32', 's3', 3)
    a.branch('s_cbranch_scc1', 'K2_END')
    a.salu('s_and_b32', 's4', 's%d' % sW, 4)
    a.salu('s_mul_i32', 's4', 's4', 12288)
    a.salu('s_lshl_b32', 's5', 's3', 12)
    a.salu('s_add_u32', 's4', 's4', 's5')
    a.valu('v_add_u32', v(T1), 's4', v(RA))
    for ww in range(3):
        pass
    for ww in range(4):
        for r in range(0, 16, 4):
            a.ds_read128(OF + ww * 16 + r, T1, ww * 12288 + (r // 4) * 1024)
    a.wait(lgkm=0)
    for r in range(16):
        a.valu('v_add_f32', v(OF + r), v(OF + r), v(OF + 16 + r))
        a.valu('v_add_f32', v(OF + 32 + r), v(OF + 32 + r), v(OF + 48 + r))
        a.valu('v_add_f32', v(OF + r), v(OF + r), v(OF + 32 + r))
    for i in range(8):
        a.valu('v_cvt_pk_bf16_f32', v(OF + 64 + i), v(OF + 2 * i), v(OF + 2 * i + 1))
    a.salu('s_lshr_b32', 's4', 's%d' % sW, 2)
    a.salu('s_mul_i32', 's4', 's4', 3)
    a.salu('s_add_u32', 's4', 's4', 's3')
    a.salu('s_lshr_b32', 's5', 's4', 1)
    a.salu('s_and_b32', 's6', 's4', 1)
    a.salu('s_lshl_b32', 's5', 's5', 16)
    a.salu('s_lshl_b32', 's6', 's6', 5)
    a.salu('s_add_u32', 's5', 's5', 's6')
    a.valu('v_and_b32', v(T0), 31, v(LANE))
    a.valu('v_lshlrev_b32', v(T0), 11, v(T0))
    a.valu('v_lshrrev_b32', v(T1), 5, v(LANE))
    a.valu('v_lshl_add_u32', v(T0), v(T1), 6, v(T0))
    a.bstore128(OF + 64, T0, SRD_OUT, 's5', 0, extra=(' nt' if knt & 4 else ''))
    a.bstore128(OF + 68, T0, SRD_OUT, 's5', 16, extra=(' nt' if knt & 4 else ''))
    if stamps:
        a.wait(vm=0)
        stamp()
        a.wait(lgkm=0)
        a.scmp('s_cmp_lg_u32', 's%d' % sW, 0)
        a.branch('s_cbranch_scc1', 'K2_END')
        a.salu('s_lshl_b32', 's3', 's2', 6)
        a.salu('s_add_u32', 's3', 's3', 66 << 20)
        a.salu('s_add_u32', 's4', 's34', 's3')
        a.salu('s_addc_u32', 's5', 's35', 0)
        a.salu('s_mov_b32', 's6', 64)
        a.salu('s_mov_b32', 's7', '0x00020000')
        a.valu('v_mov_b32', v(T0), 0)
        for i in range(nst[0]):
            a.valu('v_mov_b32', v(T1), 's%d' % (40 + 2 * i))
            a.bstore32(T1, T0, 4, '0', 4 * i)
    a.label('K2_END')
    a.other('s_endpgm')
```

```python
from asmlib import Asm
ACC = 0
OF = 96
WF = 192
WA = 208
DW = 210; VO = 211; LANE = 212; T0 = 213; T1 = 214; T2 = 215; RA = 216; T3 = 217
NV = 220
SRD_O = 8; SRD_W = 12; SRD_OUT = 16
sW = 20; sBLK = 21; sB = 22; sQH = 23; sNT = 24; sM0 = 25; sWSO = 26; sT = 27; sOSO = 28

def gen_k2(a: Asm, name, stamps=False, nomfma=False, depth=3, ro=0, rw=0, noo=0, now=0, knt=0, red2=0):
    v = a.vr
    nst = [0]
    def stamp():
        if not stamps: return
        a.other('s_memrealtime s[%d:%d]' % (40 + 2 * nst[0], 41 + 2 * nst[0]))
        nst[0] += 1
    a.raw('.p2align 8'); a.raw('.type %s,@function' % name); a.raw(name + ':')
    a.scmp('s_cmp_ge_u32', 's2', 256)
    a.branch('s_cbranch_scc1', 'K2_END')
    stamp()
    a.salu('s_and_b32', 's3', 's2', 7)
    a.salu('s_lshr_b32', 's4', 's2', 3)
    a.salu('s_and_b32', 's%d' % sBLK, 's3', 1)
    a.salu('s_lshr_b32', 's5', 's3', 1)
    a.salu('s_lshl_b32', 's5', 's5', 1)
    a.salu('s_and_b32', 's6', 's4', 1)
    a.salu('s_add_u32', 's%d' % sB, 's5', 's6')
    a.salu('s_bfe_u32', 's%d' % sQH, 's4', '0x10001')
    a.salu('s_lshr_b32', 's%d' % sNT, 's4', 2)
    a.salu('s_mul_i32', 's5', 's%d' % sBLK, 40)
    a.salu('s_add_u32', 's6', 's0', 's5')
    a.salu('s_addc_u32', 's7', 's1', 0)
    a.other('s_load_dwordx2 s[30:31], s[6:7], 32')
    a.other('s_load_dwordx2 s[32:33], s[0:1], 80')
    a.other('s_load_dwordx2 s[34:35], s[0:1], 96')
    a.valu('v_and_b32', v(LANE), 63, 'v0')
    a.valu('v_lshrrev_b32', v(T0), 6, 'v0')
    a.rfl(sW, T0)
    a.wait(lgkm=0)
    a.salu('s_lshl_b32', 's3', 's%d' % sBLK, 3)
    a.salu('s_add_u32', 's3', 's3', 's%d' % sB)
    a.salu('s_mul_i32', 's3', 's3', 6)
    a.salu('s_mul_i32', 's4', 's%d' % sQH, 3)
    a.salu('s_add_u32', 's3', 's3', 's4')
    a.salu('s_lshl_b32', 's3', 's3', 18)
    a.salu('s_add_u32', 's%d' % SRD_O, 's34', 's3')
    a.salu('s_addc_u32', 's%d' % (SRD_O + 1), 's35', 0)
    a.salu('s_mov_b32', 's%d' % (SRD_O + 2), 3 * 262144)
    a.salu('s_mov_b32', 's%d' % (SRD_O + 3), '0x00020000')
    a.salu('s_lshl_b32', 's3', 's%d' % sNT, 7)
    a.salu('s_add_u32', 's%d' % SRD_W, 's30', 's3')
    a.salu('s_addc_u32', 's%d' % (SRD_W + 1), 's31', 0)
    a.salu('s_sub_u32', 's%d' % (SRD_W + 2), 4194304, 's3')
    a.salu('s_mov_b32', 's%d' % (SRD_W + 3), '0x00020000')
    a.salu('s_mul_i32', 's3', 's%d' % sB, 192)
    a.salu('s_mul_i32', 's4', 's%d' % sQH, 96)
    a.salu('s_add_u32', 's3', 's3', 's4')
    a.salu('s_lshl_b32', 's3', 's3', 11)
    a.salu('s_lshl_b32', 's4', 's%d' % sBLK, 10)
    a.salu('s_add_u32', 's3', 's3', 's4')
    a.salu('s_lshl_b32', 's4', 's%d' % sNT, 7)
    a.salu('s_add_u32', 's3', 's3', 's4')
    a.salu('s_add_u32', 's%d' % SRD_OUT, 's32', 's3')
    a.salu('s_addc_u32', 's%d' % (SRD_OUT + 1), 's33', 0)
    a.salu('s_sub_u32', 's%d' % (SRD_OUT + 2), 8 * 192 * 2048, 's3')
    a.salu('s_mov_b32', 's%d' % (SRD_OUT + 3), '0x00020000')
    a.salu('s_lshl_b32', 's%d' % sM0, 's%d' % sW, 14)
    a.salu('s_lshl_b32', 's%d' % sWSO, 's%d' % sW, 19)
    a.salu('s_lshl_b32', 's%d' % sOSO, 's%d' % sW, 15)
    a.valu('v_bfe_u32', v(T0), v(LANE), 4, 1)
    a.valu('v_lshlrev_b32', v(T0), 1, v(T0))
    a.valu('v_and_b32', v(T1), 7, v(LANE))
    a.valu('v_xor_b32', v(T0), v(T0), v(T1))
    a.valu('v_lshlrev_b32', v(T0), 4, v(T0))
    a.valu('v_lshrrev_b32', v(T1), 3, v(LANE))
    a.valu('v_lshl_add_u32', v(DW), v(T1), 10, v(T0))
    a.valu('v_lshlrev_b32', v(VO), 4, v(LANE))
    a.valu('v_lshrrev_b32', v(T0), 5, v(LANE))
    a.valu('v_bfe_u32', v(T1), v(LANE), 2, 2)
    a.valu('v_lshl_add_u32', v(T0), v(T0), 2, v(T1))
    a.valu('v_lshlrev_b32', v(T0), 7, v(T0))
    a.valu('v_lshrrev_b32', v(T1), 1, v(T1))
    a.valu('v_lshl_add_u32', v(T0), v(T1), 5, v(T0))
    a.valu('v_bfe_u32', v(T1), v(LANE), 4, 1)
    a.valu('v_lshl_add_u32', v(T0), v(T1), 4, v(T0))
    a.valu('v_and_b32', v(T1), 1, v(LANE))
    a.valu('v_lshl_add_u32', v(T0), v(T1), 6, v(T0))
    a.valu('v_bfe_u32', v(T1), v(LANE), 1, 1)
    a.valu('v_lshl_add_u32', v(T0), v(T1), 3, v(T0))
    a.valu('v_add_u32', v(WA), 's%d' % sM0, v(T0))
    a.valu('v_xor_b32', v(WA + 1), 32, v(WA))

    a.salu('s_lshr_b32', 's3', 's2', 3)
    a.salu('s_and_b32', 's3', 's3', 3)
    a.salu('s_mul_i32', 's3', 's3', rw)
    a.salu('s_mul_i32', 's4', 's%d' % sNT, ro)
    a.salu('s_add_u32', 's3', 's3', 's4')
    a.salu('s_and_b32', 's3', 's3', 15)
    a.salu('s_lshl_b32', 's36', 's3', 11)
    a.salu('s_lshl_b32', 's37', 's3', 15)
    def issue(c):
        sl = c & 3
        a.salu('s_add_u32', 's38', 's%d' % sWSO, 's37')
        a.salu('s_add_u32', 's39', 's%d' % sOSO, 's36')
        a.salu('s_add_u32', 's36', 's36', 2048); a.salu('s_and_b32', 's36', 's36', 32767)
        a.salu('s_add_u32', 's37', 's37', 32768); a.salu('s_and_b32', 's37', 's37', 524287)
        for j in range(4):
            a.salu('s_add_u32', 'm0', 's%d' % sM0, sl * 4096 + j * 1024)
            a.salu('s_add_u32', 's%d' % sT, 's38', (j * 8) * 1024)
            if not now: a.dma(DW, SRD_W, 's%d' % sT, bool(knt & 1))
        for qt in range(3):
            a.salu('s_add_u32', 's%d' % sT, 's39', qt * 262144)
            for u2 in range(2):
                if not noo: a.bload128(OF + sl * 24 + (qt * 2 + u2) * 4, VO, SRD_O, 's%d' % sT, u2 * 1024, extra=(' nt' if knt & 2 else ''))
    for c in range(depth):
        issue(c)
    if red2:
        SB = 131072
        for r in range(4): a.valu('v_mov_b32', v(ACC + r), 0)
        a.valu('v_lshlrev_b32', v(RA), 4, v(LANE))
        a.salu('s_mul_i32', 's3', 's%d' % sW, 3072)
        a.salu('s_add_u32', 's3', 's3', SB)
        a.valu('v_add_u32', v(T0), 's3', v(RA))
        for r in range(3): a.ds_write128(T0, ACC, r * 1024)
        a.wait(lgkm=0)
        a.barrier()
    stamp()
    for c in range(16):
        sl = c & 3
        if c + depth < 16:
            issue(c + depth)
        rem = min(depth, 15 - c)
        a.wait(vm=(10 - 6 * noo - 4 * now) * rem)
        for u2 in range(2):
            for nt in range(2):
                for e in range(2):
                    a.ds_read_tr(WF + (nt * 2 + u2) * 4 + 2 * e, WA + nt, sl * 4096 + (16 * u2 + 8 * e) * 128)
        for u2 in range(2):
            a.wait(lgkm=(4 if u2 == 0 else 0))
            for qt in range(3):
                for nt in range(2):
                    if nomfma and c > 0: continue
                    a.mfma32(ACC + (qt * 2 + nt) * 16, WF + (nt * 2 + u2) * 4, OF + sl * 24 + (qt * 2 + u2) * 4, C=(0 if (c == 0 and u2 == 0) else 'same'))
    stamp()
    if stamps:
        a.wait(lgkm=0)
        a.salu('s_lshl_b32', 's3', 's2', 3)
        a.salu('s_add_u32', 's3', 's3', 's%d' % sW)
        a.salu('s_lshl_b32', 's3', 's3', 2)
        a.salu('s_add_u32', 's3', 's3', 67 << 20)
        a.salu('s_add_u32', 's4', 's34', 's3')
        a.salu('s_addc_u32', 's5', 's35', 0)
        a.salu('s_mov_b32', 's6', 64)
        a.salu('s_mov_b32', 's7', '0x00020000')
        a.valu('v_mov_b32', v(T0), 0)
        a.valu('v_mov_b32', v(T1), 's44')
        a.bstore32(T1, T0, 4, '0', 0)
    if not red2:
        a.barrier()
        stamp()
        a.valu('v_lshlrev_b32', v(RA), 4, v(LANE))
        a.salu('s_mul_i32', 's3', 's%d' % sW, 12288)
        a.valu('v_add_u32', v(T0), 's3', v(RA))
        a.salu('s_xor_b32', 's4', 's%d' % sW, 4)
        a.salu('s_mul_i32', 's4', 's4', 12288)
        a.valu('v_add_u32', v(T1), 's4', v(RA))
        a.scmp('s_cmp_lt_u32', 's%d' % sW, 4)
        a.branch('s_cbranch_scc0', 'K2_P1B')
        for r in range(0, 48, 4):
            a.ds_write128(T0, ACC + 48 + r, (r // 4) * 1024)
        a.branch('s_branch', 'K2_P1C')
        a.label('K2_P1B')
        for r in range(0, 48, 4):
            a.ds_write128(T0, ACC + r, (r // 4) * 1024)
        for r in range(48):
            a.valu('v_mov_b32', v(ACC + r), v(ACC + 48 + r))
        a.label('K2_P1C')
        a.wait(lgkm=0)
        a.barrier()
        for r in range(0, 48, 4):
            a.ds_read128(OF + r, T1, (r // 4) * 1024)
        a.wait(lgkm=0)
        for r in range(48):
            a.valu('v_add_f32', v(ACC + r), v(ACC + r), v(OF + r))
        a.barrier()
        for r in range(0, 48, 4):
            a.ds_write128(T0, ACC + r, (r // 4) * 1024)
        a.wait(lgkm=0)
        a.barrier()
        a.salu('s_and_b32', 's3', 's%d' % sW, 3)
        a.scmp('s_cmp_eq_u32', 's3', 3)
        a.branch('s_cbranch_scc1', 'K2_END')
        a.salu('s_and_b32', 's4', 's%d' % sW, 4)
        a.salu('s_mul_i32', 's4', 's4', 12288)
        a.salu('s_lshl_b32', 's5', 's3', 12)
        a.salu('s_add_u32', 's4', 's4', 's5')
        a.valu('v_add_u32', v(T1), 's4', v(RA))
        for ww in range(3):
            pass
        for ww in range(4):
            for r in range(0, 16, 4):
                a.ds_read128(OF + ww * 16 + r, T1, ww * 12288 + (r // 4) * 1024)
        a.wait(lgkm=0)
        for r in range(16):
            a.valu('v_add_f32', v(OF + r), v(OF + r), v(OF + 16 + r))
            a.valu('v_add_f32', v(OF + 32 + r), v(OF + 32 + r), v(OF + 48 + r))
            a.valu('v_add_f32', v(OF + r), v(OF + r), v(OF + 32 + r))
        for i in range(8):
            a.valu('v_cvt_pk_bf16_f32', v(OF + 64 + i), v(OF + 2 * i), v(OF + 2 * i + 1))
        a.salu('s_lshr_b32', 's4', 's%d' % sW, 2)
        a.salu('s_mul_i32', 's4', 's4', 3)
        a.salu('s_add_u32', 's4', 's4', 's3')
        a.salu('s_lshr_b32', 's5', 's4', 1)
        a.salu('s_and_b32', 's6', 's4', 1)
        a.salu('s_lshl_b32', 's5', 's5', 16)
        a.salu('s_lshl_b32', 's6', 's6', 5)
        a.salu('s_add_u32', 's5', 's5', 's6')
        a.valu('v_and_b32', v(T0), 31, v(LANE))
        a.valu('v_lshlrev_b32', v(T0), 11, v(T0))
        a.valu('v_lshrrev_b32', v(T1), 5, v(LANE))
        a.valu('v_lshl_add_u32', v(T0), v(T1), 6, v(T0))
        a.bstore128(OF + 64, T0, SRD_OUT, 's5', 0, extra=(' nt' if knt & 4 else ''))
        a.bstore128(OF + 68, T0, SRD_OUT, 's5', 16, extra=(' nt' if knt & 4 else ''))
    else:
        XB = SB + 24576
        a.scmp('s_cmp_ge_u32', 's%d' % sW, 4)
        a.branch('s_cbranch_scc1', 'K2_HI')
        a.valu('v_lshlrev_b32', v(T0), 2, v(LANE))
        a.valu('v_add_u32', v(T0), SB, v(T0))
        for r in range(96):
            a.ins('ds_add_f32 v%d, v%d offset:%d' % (T0, ACC + r, r * 256), 'store', (), [T0, ACC + r])
        a.wait(lgkm=0)
        a.barrier()
        a.branch('s_branch', 'K2_END')
        a.label('K2_HI')
        a.valu('v_lshlrev_b32', v(T2), 2, v(LANE))
        a.valu('v_add_u32', v(T2), SB, v(T2))
        a.valu('v_and_b32', v(T3), 31, v(LANE))
        a.valu('v_lshlrev_b32', v(T3), 11, v(T3))
        a.valu('v_lshrrev_b32', v(T1), 5, v(LANE))
        a.valu('v_lshl_add_u32', v(T3), v(T1), 6, v(T3))
        a.valu('v_lshlrev_b32', v(RA), 4, v(LANE))
        for i in range(4):
            if i < 3:
                a.scmp('s_cmp_lg_u32', 's%d' % sW, 4 + i)
                a.branch('s_cbranch_scc1', 'K2_H%d' % (i + 1))
            def chunk_off(j, c):
                return (4 + j) * 16384 + c * 1024 if c < 16 else XB + j * 2048 + (c - 16) * 1024
            for slot in range(3):
                q = (i + 1 + slot) & 3
                for k in range(6):
                    a.ds_write128(RA, ACC + 24 * q + 4 * k, 0) if False else a.ins('ds_write_b128 v%d, v[%d:%d] offset:%d' % (RA if chunk_off(i, 6 * slot + k) < 65536 else DW, ACC + 24 * q + 4 * k, ACC + 24 * q + 4 * k + 3, chunk_off(i, 6 * slot + k) % 65536), 'store', (), [RA, DW, VO] + list(range(ACC + 24 * q + 4 * k, ACC + 24 * q + 4 * k + 4))) if False else None
            writes = []
            for slot in range(3):
                q = (i + 1 + slot) & 3
                for k in range(6):
                    writes.append((chunk_off(i, 6 * slot + k), ACC + 24 * q + 4 * k))
            reads = []
            for j in range(4):
                if j == i: continue
                slot = (i - j - 1) & 3
                for k in range(6):
                    reads.append((chunk_off(j, 6 * slot + k), len(reads)))
            AB = [RA, DW, VO]
            a.valu('v_add_u32', v(DW), 65536, v(RA))
            a.valu('v_add_u32', v(VO), 131072, v(RA))
            for off, reg in writes:
                a.ds_write128(AB[off >> 16], reg, off & 65535)
            a.wait(lgkm=0)
            a.barrier()
            for off, n in reads:
                a.ds_read128(OF + 4 * n, AB[off >> 16], off & 65535)
            for k in range(24):
                a.ds_read32(OF + 72 + k, T2, (24 * i + k) * 256)
            a.wait(lgkm=0)
            for k in range(24):
                r = ACC + 24 * i + k
                a.valu('v_add_f32', v(r), v(r), v(OF + k))
                a.valu('v_add_f32', v(OF + 24 + k), v(OF + 24 + k), v(OF + 48 + k))
                a.valu('v_add_f32', v(r), v(r), v(OF + 72 + k))
                a.valu('v_add_f32', v(r), v(r), v(OF + 24 + k))
            for k in range(3):
                gidx = 3 * i + k; ti = gidx >> 1; half = gidx & 1
                for ii in range(4):
                    a.valu('v_cvt_pk_bf16_f32', v(OF + 4 * k + ii), v(ACC + 8 * gidx + 2 * ii), v(ACC + 8 * gidx + 2 * ii + 1))
                a.salu('s_mov_b32', 's5', (ti >> 1) * 65536 + (ti & 1) * 32)
                a.bstore128(OF + 4 * k, T3, SRD_OUT, 's5', half * 16, extra=(' nt' if knt & 4 else ''))
            if i < 3:
                a.branch('s_branch', 'K2_END')
                a.label('K2_H%d' % (i + 1))
    if stamps:
        a.wait(vm=0)
        stamp()
        a.wait(lgkm=0)
        a.scmp('s_cmp_lg_u32', 's%d' % sW, 0)
        a.branch('s_cbranch_scc1', 'K2_END')
        a.salu('s_lshl_b32', 's3', 's2', 6)
        a.salu('s_add_u32', 's3', 's3', 66 << 20)
        a.salu('s_add_u32', 's4', 's34', 's3')
        a.salu('s_addc_u32', 's5', 's35', 0)
        a.salu('s_mov_b32', 's6', 64)
        a.salu('s_mov_b32', 's7', '0x00020000')
        a.valu('v_mov_b32', v(T0), 0)
        for i in range(nst[0]):
            a.valu('v_mov_b32', v(T1), 's%d' % (40 + 2 * i))
            a.bstore32(T1, T0, 4, '0', 4 * i)
    a.label('K2_END')
    a.other('s_endpgm')
```

```python
from asmlib import Asm
ACC = 0
OF = 96
WF = 192
WA = 208
DW = 210; VO = 211; LANE = 212; T0 = 213; T1 = 214; T2 = 215; RA = 216; T3 = 217
NV = 220
SRD_O = 8; SRD_W = 12; SRD_OUT = 16
sW = 20; sBLK = 21; sB = 22; sQH = 23; sNT = 24; sM0 = 25; sWSO = 26; sT = 27; sOSO = 28

def gen_k2(a: Asm, name, stamps=False, nomfma=False, depth=3, ro=0, rw=0, noo=0, now=0, knt=0, red2=0):
    v = a.vr
    nst = [0]
    def stamp():
        if not stamps: return
        a.other('s_memrealtime s[%d:%d]' % (40 + 2 * nst[0], 41 + 2 * nst[0]))
        nst[0] += 1
    a.raw('.p2align 8'); a.raw('.type %s,@function' % name); a.raw(name + ':')
    a.scmp('s_cmp_ge_u32', 's2', 256)
    a.branch('s_cbranch_scc1', 'K2_END')
    stamp()
    a.salu('s_and_b32', 's3', 's2', 7)
    a.salu('s_lshr_b32', 's4', 's2', 3)
    a.salu('s_and_b32', 's%d' % sBLK, 's3', 1)
    a.salu('s_lshr_b32', 's5', 's3', 1)
    a.salu('s_lshl_b32', 's5', 's5', 1)
    a.salu('s_and_b32', 's6', 's4', 1)
    a.salu('s_add_u32', 's%d' % sB, 's5', 's6')
    a.salu('s_bfe_u32', 's%d' % sQH, 's4', '0x10001')
    a.salu('s_lshr_b32', 's%d' % sNT, 's4', 2)
    a.salu('s_mul_i32', 's5', 's%d' % sBLK, 40)
    a.salu('s_add_u32', 's6', 's0', 's5')
    a.salu('s_addc_u32', 's7', 's1', 0)
    a.other('s_load_dwordx2 s[30:31], s[6:7], 32')
    a.other('s_load_dwordx2 s[32:33], s[0:1], 80')
    a.other('s_load_dwordx2 s[34:35], s[0:1], 96')
    a.valu('v_and_b32', v(LANE), 63, 'v0')
    a.valu('v_lshrrev_b32', v(T0), 6, 'v0')
    a.rfl(sW, T0)
    a.wait(lgkm=0)
    a.salu('s_lshl_b32', 's3', 's%d' % sBLK, 3)
    a.salu('s_add_u32', 's3', 's3', 's%d' % sB)
    a.salu('s_mul_i32', 's3', 's3', 6)
    a.salu('s_mul_i32', 's4', 's%d' % sQH, 3)
    a.salu('s_add_u32', 's3', 's3', 's4')
    a.salu('s_lshl_b32', 's3', 's3', 18)
    a.salu('s_add_u32', 's%d' % SRD_O, 's34', 's3')
    a.salu('s_addc_u32', 's%d' % (SRD_O + 1), 's35', 0)
    a.salu('s_mov_b32', 's%d' % (SRD_O + 2), 3 * 262144)
    a.salu('s_mov_b32', 's%d' % (SRD_O + 3), '0x00020000')
    a.salu('s_lshl_b32', 's3', 's%d' % sNT, 7)
    a.salu('s_add_u32', 's%d' % SRD_W, 's30', 's3')
    a.salu('s_addc_u32', 's%d' % (SRD_W + 1), 's31', 0)
    a.salu('s_sub_u32', 's%d' % (SRD_W + 2), 4194304, 's3')
    a.salu('s_mov_b32', 's%d' % (SRD_W + 3), '0x00020000')
    a.salu('s_mul_i32', 's3', 's%d' % sB, 192)
    a.salu('s_mul_i32', 's4', 's%d' % sQH, 96)
    a.salu('s_add_u32', 's3', 's3', 's4')
    a.salu('s_lshl_b32', 's3', 's3', 11)
    a.salu('s_lshl_b32', 's4', 's%d' % sBLK, 10)
    a.salu('s_add_u32', 's3', 's3', 's4')
    a.salu('s_lshl_b32', 's4', 's%d' % sNT, 7)
    a.salu('s_add_u32', 's3', 's3', 's4')
    a.salu('s_add_u32', 's%d' % SRD_OUT, 's32', 's3')
    a.salu('s_addc_u32', 's%d' % (SRD_OUT + 1), 's33', 0)
    a.salu('s_sub_u32', 's%d' % (SRD_OUT + 2), 8 * 192 * 2048, 's3')
    a.salu('s_mov_b32', 's%d' % (SRD_OUT + 3), '0x00020000')
    a.salu('s_lshl_b32', 's%d' % sM0, 's%d' % sW, 14)
    a.salu('s_lshl_b32', 's%d' % sWSO, 's%d' % sW, 19)
    a.salu('s_lshl_b32', 's%d' % sOSO, 's%d' % sW, 15)
    a.valu('v_bfe_u32', v(T0), v(LANE), 4, 1)
    a.valu('v_lshlrev_b32', v(T0), 1, v(T0))
    a.valu('v_and_b32', v(T1), 7, v(LANE))
    a.valu('v_xor_b32', v(T0), v(T0), v(T1))
    a.valu('v_lshlrev_b32', v(T0), 4, v(T0))
    a.valu('v_lshrrev_b32', v(T1), 3, v(LANE))
    a.valu('v_lshl_add_u32', v(DW), v(T1), 10, v(T0))
    a.valu('v_lshlrev_b32', v(VO), 4, v(LANE))
    a.valu('v_lshrrev_b32', v(T0), 5, v(LANE))
    a.valu('v_bfe_u32', v(T1), v(LANE), 2, 2)
    a.valu('v_lshl_add_u32', v(T0), v(T0), 2, v(T1))
    a.valu('v_lshlrev_b32', v(T0), 7, v(T0))
    a.valu('v_lshrrev_b32', v(T1), 1, v(T1))
    a.valu('v_lshl_add_u32', v(T0), v(T1), 5, v(T0))
    a.valu('v_bfe_u32', v(T1), v(LANE), 4, 1)
    a.valu('v_lshl_add_u32', v(T0), v(T1), 4, v(T0))
    a.valu('v_and_b32', v(T1), 1, v(LANE))
    a.valu('v_lshl_add_u32', v(T0), v(T1), 6, v(T0))
    a.valu('v_bfe_u32', v(T1), v(LANE), 1, 1)
    a.valu('v_lshl_add_u32', v(T0), v(T1), 3, v(T0))
    a.valu('v_add_u32', v(WA), 's%d' % sM0, v(T0))
    a.valu('v_xor_b32', v(WA + 1), 32, v(WA))

    a.salu('s_lshr_b32', 's3', 's2', 3)
    a.salu('s_and_b32', 's3', 's3', 3)
    a.salu('s_mul_i32', 's3', 's3', rw)
    a.salu('s_mul_i32', 's4', 's%d' % sNT, ro)
    a.salu('s_add_u32', 's3', 's3', 's4')
    a.salu('s_and_b32', 's3', 's3', 15)
    a.salu('s_lshl_b32', 's36', 's3', 11)
    a.salu('s_lshl_b32', 's37', 's3', 15)
    def issue(c):
        sl = c & 3
        a.salu('s_add_u32', 's38', 's%d' % sWSO, 's37')
        a.salu('s_add_u32', 's39', 's%d' % sOSO, 's36')
        a.salu('s_add_u32', 's36', 's36', 2048); a.salu('s_and_b32', 's36', 's36', 32767)
        a.salu('s_add_u32', 's37', 's37', 32768); a.salu('s_and_b32', 's37', 's37', 524287)
        for j in range(4):
            a.salu('s_add_u32', 'm0', 's%d' % sM0, sl * 4096 + j * 1024)
            a.salu('s_add_u32', 's%d' % sT, 's38', (j * 8) * 1024)
            if not now: a.dma(DW, SRD_W, 's%d' % sT, bool(knt & 1))
        for qt in range(3):
            a.salu('s_add_u32', 's%d' % sT, 's39', qt * 262144)
            for u2 in range(2):
                if not noo: a.bload128(OF + sl * 24 + (qt * 2 + u2) * 4, VO, SRD_O, 's%d' % sT, u2 * 1024, extra=(' nt' if knt & 2 else ''))
    for c in range(depth):
        issue(c)
    SB = 131072
    if red2 == 1:
        for r in range(4): a.valu('v_mov_b32', v(ACC + r), 0)
        a.valu('v_lshlrev_b32', v(RA), 4, v(LANE))
        a.salu('s_mul_i32', 's3', 's%d' % sW, 3072)
        a.salu('s_add_u32', 's3', 's3', SB)
        a.valu('v_add_u32', v(T0), 's3', v(RA))
        for r in range(3): a.ds_write128(T0, ACC, r * 1024)
        a.wait(lgkm=0)
        a.barrier()
    stamp()
    for c in range(16):
        sl = c & 3
        if c + depth < 16:
            issue(c + depth)
        rem = min(depth, 15 - c)
        a.wait(vm=(10 - 6 * noo - 4 * now) * rem)
        for u2 in range(2):
            for nt in range(2):
                for e in range(2):
                    a.ds_read_tr(WF + (nt * 2 + u2) * 4 + 2 * e, WA + nt, sl * 4096 + (16 * u2 + 8 * e) * 128)
        for u2 in range(2):
            a.wait(lgkm=(4 if u2 == 0 else 0))
            for qt in range(3):
                for nt in range(2):
                    if nomfma and c > 0: continue
                    a.mfma32(ACC + (qt * 2 + nt) * 16, WF + (nt * 2 + u2) * 4, OF + sl * 24 + (qt * 2 + u2) * 4, C=(0 if (c == 0 and u2 == 0) else 'same'))
    stamp()
    if stamps:
        a.wait(lgkm=0)
        a.salu('s_lshl_b32', 's3', 's2', 3)
        a.salu('s_add_u32', 's3', 's3', 's%d' % sW)
        a.salu('s_lshl_b32', 's3', 's3', 2)
        a.salu('s_add_u32', 's3', 's3', 67 << 20)
        a.salu('s_add_u32', 's4', 's34', 's3')
        a.salu('s_addc_u32', 's5', 's35', 0)
        a.salu('s_mov_b32', 's6', 64)
        a.salu('s_mov_b32', 's7', '0x00020000')
        a.valu('v_mov_b32', v(T0), 0)
        a.valu('v_mov_b32', v(T1), 's44')
        a.bstore32(T1, T0, 4, '0', 0)
    if not red2:
        a.barrier()
        stamp()
        a.valu('v_lshlrev_b32', v(RA), 4, v(LANE))
        a.salu('s_mul_i32', 's3', 's%d' % sW, 12288)
        a.valu('v_add_u32', v(T0), 's3', v(RA))
        a.salu('s_xor_b32', 's4', 's%d' % sW, 4)
        a.salu('s_mul_i32', 's4', 's4', 12288)
        a.valu('v_add_u32', v(T1), 's4', v(RA))
        a.scmp('s_cmp_lt_u32', 's%d' % sW, 4)
        a.branch('s_cbranch_scc0', 'K2_P1B')
        for r in range(0, 48, 4):
            a.ds_write128(T0, ACC + 48 + r, (r // 4) * 1024)
        a.branch('s_branch', 'K2_P1C')
        a.label('K2_P1B')
        for r in range(0, 48, 4):
            a.ds_write128(T0, ACC + r, (r // 4) * 1024)
        for r in range(48):
            a.valu('v_mov_b32', v(ACC + r), v(ACC + 48 + r))
        a.label('K2_P1C')
        a.wait(lgkm=0)
        a.barrier()
        for r in range(0, 48, 4):
            a.ds_read128(OF + r, T1, (r // 4) * 1024)
        a.wait(lgkm=0)
        for r in range(48):
            a.valu('v_add_f32', v(ACC + r), v(ACC + r), v(OF + r))
        a.barrier()
        for r in range(0, 48, 4):
            a.ds_write128(T0, ACC + r, (r // 4) * 1024)
        a.wait(lgkm=0)
        a.barrier()
        a.salu('s_and_b32', 's3', 's%d' % sW, 3)
        a.scmp('s_cmp_eq_u32', 's3', 3)
        a.branch('s_cbranch_scc1', 'K2_END')
        a.salu('s_and_b32', 's4', 's%d' % sW, 4)
        a.salu('s_mul_i32', 's4', 's4', 12288)
        a.salu('s_lshl_b32', 's5', 's3', 12)
        a.salu('s_add_u32', 's4', 's4', 's5')
        a.valu('v_add_u32', v(T1), 's4', v(RA))
        for ww in range(3):
            pass
        for ww in range(4):
            for r in range(0, 16, 4):
                a.ds_read128(OF + ww * 16 + r, T1, ww * 12288 + (r // 4) * 1024)
        a.wait(lgkm=0)
        for r in range(16):
            a.valu('v_add_f32', v(OF + r), v(OF + r), v(OF + 16 + r))
            a.valu('v_add_f32', v(OF + 32 + r), v(OF + 32 + r), v(OF + 48 + r))
            a.valu('v_add_f32', v(OF + r), v(OF + r), v(OF + 32 + r))
        for i in range(8):
            a.valu('v_cvt_pk_bf16_f32', v(OF + 64 + i), v(OF + 2 * i), v(OF + 2 * i + 1))
        a.salu('s_lshr_b32', 's4', 's%d' % sW, 2)
        a.salu('s_mul_i32', 's4', 's4', 3)
        a.salu('s_add_u32', 's4', 's4', 's3')
        a.salu('s_lshr_b32', 's5', 's4', 1)
        a.salu('s_and_b32', 's6', 's4', 1)
        a.salu('s_lshl_b32', 's5', 's5', 16)
        a.salu('s_lshl_b32', 's6', 's6', 5)
        a.salu('s_add_u32', 's5', 's5', 's6')
        a.valu('v_and_b32', v(T0), 31, v(LANE))
        a.valu('v_lshlrev_b32', v(T0), 11, v(T0))
        a.valu('v_lshrrev_b32', v(T1), 5, v(LANE))
        a.valu('v_lshl_add_u32', v(T0), v(T1), 6, v(T0))
        a.bstore128(OF + 64, T0, SRD_OUT, 's5', 0, extra=(' nt' if knt & 4 else ''))
        a.bstore128(OF + 68, T0, SRD_OUT, 's5', 16, extra=(' nt' if knt & 4 else ''))
    elif red2 == 2:
        a.valu('v_lshlrev_b32', v(RA), 4, v(LANE))
        a.salu('s_and_b32', 's3', 's%d' % sW, 3)
        a.salu('s_lshl_b32', 's4', 's3', 14)
        a.valu('v_add_u32', v(T0), 's4', v(RA))
        a.salu('s_lshl_b32', 's4', 's3', 13)
        a.salu('s_add_u32', 's4', 's4', SB)
        a.valu('v_add_u32', v(T1), 's4', v(RA))
        a.scmp('s_cmp_ge_u32', 's%d' % sW, 4)
        a.branch('s_cbranch_scc1', 'K2_HI')
        for c in range(24):
            a.ds_write128(T0 if c < 16 else T1, ACC + 4 * c, (c & 15) * 1024)
        a.wait(lgkm=0)
        a.barrier()
        a.branch('s_branch', 'K2_END')
        a.label('K2_HI')
        a.valu('v_and_b32', v(T3), 31, v(LANE))
        a.valu('v_lshlrev_b32', v(T3), 11, v(T3))
        a.valu('v_lshrrev_b32', v(T2), 5, v(LANE))
        a.valu('v_lshl_add_u32', v(T3), v(T2), 6, v(T3))
        a.valu('v_add_u32', v(DW), 65536, v(RA))
        AB = [RA, DW]
        a.wait(lgkm=0)
        a.barrier()
        for c in range(24):
            a.ds_read128(OF + 4 * c, T0 if c < 16 else T1, (c & 15) * 1024, tag=('r', c))
        for c in range(24):
            a.lds_need([('r', c)])
            for r in range(4):
                a.valu('v_add_f32', v(ACC + 4 * c + r), v(ACC + 4 * c + r), v(OF + 4 * c + r))
        def chunk_off(j, c):
            return (4 + j) * 16384 + c * 1024 if c < 16 else j * 16384 + (c - 16) * 1024
        for i in range(4):
            if i < 3:
                a.scmp('s_cmp_lg_u32', 's%d' % sW, 4 + i)
                a.branch('s_cbranch_scc1', 'K2_H%d' % (i + 1))
            for slot in range(3):
                q = (i + 1 + slot) & 3
                for k in range(6):
                    off = chunk_off(i, 6 * slot + k)
                    a.ds_write128(AB[off >> 16], ACC + 24 * q + 4 * k, off & 65535)
            a.wait(lgkm=0)
            a.barrier()
            n = 0
            for j in range(4):
                if j == i: continue
                slot = (i - j - 1) & 3
                for k in range(6):
                    off = chunk_off(j, 6 * slot + k)
                    a.ds_read128(OF + 4 * n, AB[off >> 16], off & 65535); n += 1
            a.wait(lgkm=0)
            for k in range(24):
                r = ACC + 24 * i + k
                a.valu('v_add_f32', v(OF + 24 + k), v(OF + 24 + k), v(OF + 48 + k))
                a.valu('v_add_f32', v(r), v(r), v(OF + k))
                a.valu('v_add_f32', v(r), v(r), v(OF + 24 + k))
            for k in range(3):
                gidx = 3 * i + k; ti = gidx >> 1; half = gidx & 1
                for ii in range(4):
                    a.valu('v_cvt_pk_bf16_f32', v(OF + 4 * k + ii), v(ACC + 8 * gidx + 2 * ii), v(ACC + 8 * gidx + 2 * ii + 1))
                a.salu('s_mov_b32', 's5', (ti >> 1) * 65536 + (ti & 1) * 32)
                a.bstore128(OF + 4 * k, T3, SRD_OUT, 's5', half * 16, extra=(' nt' if knt & 4 else ''))
            if i < 3:
                a.branch('s_branch', 'K2_END')
                a.label('K2_H%d' % (i + 1))
    else:
        XB = SB + 24576
        a.scmp('s_cmp_ge_u32', 's%d' % sW, 4)
        a.branch('s_cbranch_scc1', 'K2_HI')
        a.valu('v_lshlrev_b32', v(T0), 2, v(LANE))
        a.valu('v_add_u32', v(T0), SB, v(T0))
        for r in range(96):
            a.ins('ds_add_f32 v%d, v%d offset:%d' % (T0, ACC + r, r * 256), 'store', (), [T0, ACC + r])
        a.wait(lgkm=0)
        a.barrier()
        a.branch('s_branch', 'K2_END')
        a.label('K2_HI')
        a.valu('v_lshlrev_b32', v(T2), 2, v(LANE))
        a.valu('v_add_u32', v(T2), SB, v(T2))
        a.valu('v_and_b32', v(T3), 31, v(LANE))
        a.valu('v_lshlrev_b32', v(T3), 11, v(T3))
        a.valu('v_lshrrev_b32', v(T1), 5, v(LANE))
        a.valu('v_lshl_add_u32', v(T3), v(T1), 6, v(T3))
        a.valu('v_lshlrev_b32', v(RA), 4, v(LANE))
        for i in range(4):
            if i < 3:
                a.scmp('s_cmp_lg_u32', 's%d' % sW, 4 + i)
                a.branch('s_cbranch_scc1', 'K2_H%d' % (i + 1))
            def chunk_off(j, c):
                return (4 + j) * 16384 + c * 1024 if c < 16 else XB + j * 2048 + (c - 16) * 1024
            for slot in range(3):
                q = (i + 1 + slot) & 3
                for k in range(6):
                    a.ds_write128(RA, ACC + 24 * q + 4 * k, 0) if False else a.ins('ds_write_b128 v%d, v[%d:%d] offset:%d' % (RA if chunk_off(i, 6 * slot + k) < 65536 else DW, ACC + 24 * q + 4 * k, ACC + 24 * q + 4 * k + 3, chunk_off(i, 6 * slot + k) % 65536), 'store', (), [RA, DW, VO] + list(range(ACC + 24 * q + 4 * k, ACC + 24 * q + 4 * k + 4))) if False else None
            writes = []
            for slot in range(3):
                q = (i + 1 + slot) & 3
                for k in range(6):
                    writes.append((chunk_off(i, 6 * slot + k), ACC + 24 * q + 4 * k))
            reads = []
            for j in range(4):
                if j == i: continue
                slot = (i - j - 1) & 3
                for k in range(6):
                    reads.append((chunk_off(j, 6 * slot + k), len(reads)))
            AB = [RA, DW, VO]
            a.valu('v_add_u32', v(DW), 65536, v(RA))
            a.valu('v_add_u32', v(VO), 131072, v(RA))
            for off, reg in writes:
                a.ds_write128(AB[off >> 16], reg, off & 65535)
            a.wait(lgkm=0)
            a.barrier()
            for off, n in reads:
                a.ds_read128(OF + 4 * n, AB[off >> 16], off & 65535)
            for k in range(24):
                a.ds_read32(OF + 72 + k, T2, (24 * i + k) * 256)
            a.wait(lgkm=0)
            for k in range(24):
                r = ACC + 24 * i + k
                a.valu('v_add_f32', v(r), v(r), v(OF + k))
                a.valu('v_add_f32', v(OF + 24 + k), v(OF + 24 + k), v(OF + 48 + k))
                a.valu('v_add_f32', v(r), v(r), v(OF + 72 + k))
                a.valu('v_add_f32', v(r), v(r), v(OF + 24 + k))
            for k in range(3):
                gidx = 3 * i + k; ti = gidx >> 1; half = gidx & 1
                for ii in range(4):
                    a.valu('v_cvt_pk_bf16_f32', v(OF + 4 * k + ii), v(ACC + 8 * gidx + 2 * ii), v(ACC + 8 * gidx + 2 * ii + 1))
                a.salu('s_mov_b32', 's5', (ti >> 1) * 65536 + (ti & 1) * 32)
                a.bstore128(OF + 4 * k, T3, SRD_OUT, 's5', half * 16, extra=(' nt' if knt & 4 else ''))
            if i < 3:
                a.branch('s_branch', 'K2_END')
                a.label('K2_H%d' % (i + 1))
    if stamps:
        a.wait(vm=0)
        stamp()
        a.wait(lgkm=0)
        a.scmp('s_cmp_lg_u32', 's%d' % sW, 0)
        a.branch('s_cbranch_scc1', 'K2_END')
        a.salu('s_lshl_b32', 's3', 's2', 6)
        a.salu('s_add_u32', 's3', 's3', 66 << 20)
        a.salu('s_add_u32', 's4', 's34', 's3')
        a.salu('s_addc_u32', 's5', 's35', 0)
        a.salu('s_mov_b32', 's6', 64)
        a.salu('s_mov_b32', 's7', '0x00020000')
        a.valu('v_mov_b32', v(T0), 0)
        for i in range(nst[0]):
            a.valu('v_mov_b32', v(T1), 's%d' % (40 + 2 * i))
            a.bstore32(T1, T0, 4, '0', 4 * i)
    a.label('K2_END')
    a.other('s_endpgm')
```
